```python
import torch

def _softmax(x, axis=-1):
    return torch.softmax(x, dim=axis)

def _gelu(x):
    return torch.nn.functional.gelu(x, approximate='tanh')

def _silu(x):
    return torch.nn.functional.silu(x)

def _sigmoid(x):
    return torch.sigmoid(x)

def _layernorm(x, axis=-1, eps=1e-05):
    m = x.mean(dim=axis, keepdim=True)
    v = x.var(dim=axis, keepdim=True, unbiased=False)
    return (x - m) / torch.sqrt(v + eps)

def _scatter_add(tgt, idx, src, axis=0):
    return tgt.clone().index_add_(axis, idx, src)

def _segment_sum(src, seg, n):
    out = torch.zeros((n,) + src.shape[1:], dtype=src.dtype)
    return out.index_add_(0, seg, src)

def _pad(x, pw):
    flat = tuple((v for pair in reversed(pw) for v in pair))
    return torch.nn.functional.pad(x, flat)
kernel_name = 'standalone__tree_speculative_verify_tree_attention_over_candidate_token_tree__decode'

def setup_inputs():

    _w = lambda a: (lambda t: t.to(torch.bfloat16) if t.is_floating_point() else t)(torch.as_tensor(a))
    B, Hq, Hkv, T, C, D = (8, 16, 8, 1, 4096, 256)
    tree_mask = torch.zeros((B, T, T), dtype=float)
    for b in range(B):
        parent = torch.zeros(T, dtype=torch.int64)
        for i in range(1, T):
            parent[i] = int(torch.randint(0, i, (1,)).item())
        for i in range(T):
            j = i
            tree_mask[b, i, j] = 1.0
            while j > 0:
                j = parent[j]
                tree_mask[b, i, j] = 1.0
    return {'q': _w((lambda *s: torch.randn(*s, dtype=torch.bfloat16) * 0.8)(B, Hq, T, D)), 'k_cache': _w((lambda *s: torch.randn(*s, dtype=torch.bfloat16) * 0.8)(B, Hkv, C, D)), 'v_cache': _w((lambda *s: torch.randn(*s, dtype=torch.bfloat16) * 0.05)(B, Hkv, C, D)), 'k_tree': _w((lambda *s: torch.randn(*s, dtype=torch.bfloat16) * 0.8)(B, Hkv, T, D)), 'v_tree': _w((lambda *s: torch.randn(*s, dtype=torch.bfloat16) * 0.05)(B, Hkv, T, D)), 'tree_mask': _w(tree_mask)}

def reference(q, k_cache, v_cache, k_tree, v_tree, tree_mask):
    B, Hq, T, D = q.shape
    Hkv, C = (k_cache.shape[1], k_cache.shape[2])
    rep = Hq // Hkv
    kc = (lambda x, n, axis: torch.repeat_interleave(x, n, dim=axis))(k_cache, rep, axis=1)
    vc = (lambda x, n, axis: torch.repeat_interleave(x, n, dim=axis))(v_cache, rep, axis=1)
    kt = (lambda x, n, axis: torch.repeat_interleave(x, n, dim=axis))(k_tree, rep, axis=1)
    vt = (lambda x, n, axis: torch.repeat_interleave(x, n, dim=axis))(v_tree, rep, axis=1)
    k = torch.concatenate([kc, kt], axis=2)
    v = torch.concatenate([vc, vt], axis=2)
    scale = D ** (-0.5)
    scores = torch.einsum('bhqd,bhkd->bhqk', q, k) * scale
    ctx_mask = torch.ones((B, 1, T, C), dtype=scores.dtype)
    tm = tree_mask[:, None, :, :].clone()
    full_mask = torch.concatenate([ctx_mask, tm], axis=-1)
    scores = scores + (1.0 - full_mask) * -1000000000.0
    p = _softmax(scores, axis=-1)
    return torch.einsum('bhqk,bhkd->bhqd', p, v)
```

```python
import sys
KN = "standalone__tree_speculative_verify_tree_attention_over_candidate_token_tree__decode_kernel"
HEADER = open("standalone__tree_speculative_verify_tree_attention_over_candidate_token_tree__decode.s.ref").read().split("; Override launch geometry")[0]
CEXP = 0x3db8aa3b
import struct
def f2u(x): return struct.unpack("<I", struct.pack("<f", x))[0]
CEXP = f2u(0.0625 * 1.4426950408889634)

def gen(nsplit=4, nwaves=4, ring=32, flags="nt", fused=1, lds=0, stamp=0):
    nwg = 64 * nsplit
    kpw = 4096 // (nsplit * nwaves)
    ntile = kpw // 16
    nld = ntile * 8
    L = []; A = L.append
    ML = nwaves * 2048
    ldsb = max(lds, ML + nwaves * 16)
    A(HEADER.rstrip())
    if fused:
        A(f"; @launch grid=({nwg},1,1) block=({64*nwaves},1,1) lds={ldsb}")
    else:
        A(f"; @launch kernel={KN} grid=({nwg},1,1) block=({64*nwaves},1,1) lds={ldsb}")
        A(f"; @launch kernel=combine_kernel grid=(64,1,1) block=(64,1,1) lds=0")
    A('.amdgcn_target "amdgcn-amd-amdhsa--gfx950"')
    A(".text"); A(f".globl {KN}"); A(".p2align 8"); A(f".type {KN},@function"); A(f"{KN}:")
    VLANE, VN, VG, VOK, VOV = 1, 2, 3, 4, 5
    VMASK = 6
    ACC = 12
    VL, VM = 10, 11
    VA = 20
    VT = 28
    VQ = 32
    VVT = 64
    VST = 72
    VS = 76
    nS = max(ntile * 4, 32)
    nv = VS + nS
    assert nv <= 256
    accum = (nv + 3) // 4 * 4
    assert ring * 4 <= 256
    SK, SV, SQ, SX = 28, 32, 36, 40
    A(f"s_cmp_ge_u32 s2, {nwg}"); A("s_cbranch_scc1 L_done")
    A("s_load_dwordx16 s[8:23], s[0:1], 0")
    A("s_load_dwordx2 s[24:25], s[0:1], 64")
    A("v_lshrrev_b32 v28, 6, v0"); A(f"v_and_b32 v{VLANE}, 63, v0")
    A(f"v_and_b32 v{VN}, 15, v0")
    A("v_readfirstlane_b32 s3, v28")
    A(f"v_lshrrev_b32 v{VG}, 4, v{VLANE}")
    A(f"v_lshlrev_b32 v{VOK}, 9, v{VN}"); A(f"v_lshl_add_u32 v{VOK}, v{VG}, 4, v{VOK}")
    A(f"v_lshlrev_b32 v{VOV}, 11, v{VG}"); A(f"v_lshl_add_u32 v{VOV}, v{VN}, 4, v{VOV}")
    A(f"v_and_b32 v28, 1, v{VN}"); A("v_lshlrev_b32 v28, 9, v28"); A(f"v_lshl_add_u32 v28, v{VG}, 4, v28")
    A(f"v_lshlrev_b32 v29, 4, v{VG}")
    A(f"v_lshlrev_b32 v30, 4, v{VN}")
    import math
    ls = int(math.log2(nsplit))
    A(f"s_lshr_b32 s4, s2, {ls}")
    A(f"s_mul_i32 s5, s2, {nwaves}"); A("s_add_u32 s5, s5, s3")
    A(f"s_and_b32 s6, s5, {nsplit*nwaves-1}")
    A(f"s_mul_i32 s5, s5, {kpw*512}")
    A("s_lshl_b32 s7, s4, 10")
    A("s_lshl_b32 s26, s4, 9")
    A("s_waitcnt lgkmcnt(0)")
    def srd(d, b, n):
        A(f"s_mov_b32 s{d}, s{b}"); A(f"s_mov_b32 s{d+1}, s{b+1}"); A(f"s_mov_b32 s{d+2}, {n}"); A(f"s_mov_b32 s{d+3}, 0x20000")
    srd(SK, 10, "0x8000000"); srd(SQ, 8, 65536); srd(SV, 12, "0x8000000")
    A("s_cmp_lg_u32 s6, 0"); A("s_cbranch_scc1 L_notree0")
    srd(SX, 14, 32768)
    for j in range(8):
        A(f"buffer_load_dwordx4 v[{VS+4*j}:{VS+4*j+3}], v29, s[{SX}:{SX+3}], s26 offen offset:{64*j}")
    srd(SX + 4, 16, 32768)
    for hf in range(2):
        A(f"buffer_load_dwordx4 v[{VVT+4*hf}:{VVT+4*hf+3}], v30, s[{SX+4}:{SX+7}], s26 offen offset:{256*hf}")
    A("s_lshr_b32 s27, s4, 4"); A("s_lshl_b32 s27, s27, 2")
    A("s_load_dword s27, s[18:19], s27")
    A("L_notree0:")
    for j in range(8):
        A(f"buffer_load_dwordx4 v[{VQ+4*j}:{VQ+4*j+3}], v28, s[{SQ}:{SQ+3}], s7 offen offset:{64*j}")
    seq = [("k", t, j) for t in range(ntile) for j in range(8)] + [("v", t, j) for t in range(ntile) for j in range(8)]
    n = len(seq)
    cur = {}
    def load(i):
        if i >= n: return
        tn, t, j = seq[i]
        so = t * 8192
        if cur.get("so") != so:
            A(f"s_add_u32 s44+4, s5, {so}".replace("s44+4", "s48")); cur["so"] = so
        r = (i % ring) * 4
        if tn == "k":
            A(f"buffer_load_dwordx4 a[{r}:{r+3}], v{VOK}, s[{SK}:{SK+3}], s48 offen offset:{64*j} {flags}")
        else:
            A(f"buffer_load_dwordx4 a[{r}:{r+3}], v{VOV}, s[{SV}:{SV+3}], s48 offen offset:{(j//2)*512+(j%2)*256} {flags}")
    for i in range(ring): load(i)
    A(f"v_lshrrev_b32 v29, 1, v{VN}")
    A("v_and_b32 v30, 1, v29")
    A("v_lshlrev_b32 v30, 4, v30")
    A("v_mov_b32 v31, 0xffff"); A("v_lshlrev_b32 v30, v30, v31")
    A("v_lshrrev_b32 v29, 1, v29")
    for j in range(4):
        A(f"v_cmp_eq_u32 vcc, {j}, v29"); A("s_nop 1"); A(f"v_cndmask_b32 v{VMASK+j}, 0, v30, vcc")
    for r in range(8): A(f"v_mov_b32 v{ACC+r}, 0")
    A(f"v_mov_b32 v{VL}, 0"); A(f"v_mov_b32 v{VM}, 0xff800000")
    A(f"s_mov_b32 s49, {CEXP:#x}")
    A(f"s_waitcnt vmcnt({ring})" if ring < 64 else "")
    A("s_cmp_lg_u32 s6, 0"); A("s_cbranch_scc1 L_notree1")
    for j in range(8):
        c = "0" if j == 0 else f"v[{VST}:{VST+3}]"
        A(f"v_mfma_f32_16x16x32_bf16 v[{VST}:{VST+3}], v[{VS+4*j}:{VS+4*j+3}], v[{VQ+4*j}:{VQ+4*j+3}], {c}")
    A("s_waitcnt lgkmcnt(0)")
    A("s_bitcmp1_b32 s4, 3")
    A("s_cselect_b32 s50, 0, 16"); A("s_lshl_b32 s27, s27, s50"); A("s_and_b32 s27, s27, 0xffff0000")
    A("v_mov_b32 v29, s27"); A("v_sub_f32 v29, 1.0, v29")
    A(f"v_mul_f32 v29, {f2u(-1.6e10):#x}, v29")
    A(f"v_cmp_gt_u32 vcc, 16, v{VLANE}")
    A("v_mov_b32 v30, 0xff800000")
    A("s_nop 4")
    A(f"v_add_f32 v{VST}, v{VST}, v29")
    A(f"v_cndmask_b32 v{VST}, v30, v{VST}, vcc")
    A(f"v_mov_b32 v{VM}, v{VST}")
    A("L_notree1:")
    def wait(i):
        issued = min(n, i + ring)
        A(f"s_waitcnt vmcnt({issued - i - 1})")
    for i in range(nld):
        t, j = divmod(i, 8)
        wait(i)
        r = (i % ring) * 4
        s = VS + 4 * t
        c = "0" if j == 0 else f"v[{s}:{s+3}]"
        A(f"v_mfma_f32_16x16x32_bf16 v[{s}:{s+3}], a[{r}:{r+3}], v[{VQ+4*j}:{VQ+4*j+3}], {c}")
        load(i + ring)
        if j == 4 and t > 0:
            s = VS + 4 * (t - 1)
            A(f"v_max3_f32 v{VM}, v{s}, v{s+1}, v{VM}"); A(f"v_max3_f32 v{VM}, v{s+2}, v{s+3}, v{VM}")
    A("s_nop 7")
    s = VS + 4 * (ntile - 1)
    A(f"v_max3_f32 v{VM}, v{s}, v{s+1}, v{VM}"); A(f"v_max3_f32 v{VM}, v{s+2}, v{s+3}, v{VM}")
    def xrow(reg, op):
        A(f"v_mov_b32 v28, v{reg}"); A("s_nop 1"); A(f"v_permlane32_swap_b32 v{reg}, v28"); A("s_nop 1"); A(f"{op} v{reg}, v{reg}, v28")
        A(f"v_mov_b32 v28, v{reg}"); A("s_nop 1"); A(f"v_permlane16_swap_b32 v{reg}, v28"); A("s_nop 1"); A(f"{op} v{reg}, v{reg}, v28")
    xrow(VM, "v_max_f32")
    def mkA(sreg, buf):
        a = VA + 4 * buf
        A(f"v_sub_f32 v28, v{sreg}, v{VM}"); A("v_mul_f32 v28, s49, v28"); A("v_exp_f32 v28, v28"); A("s_nop 0")
        A(f"v_cvt_pk_bf16_f32 v29, v28, v28"); A(f"v_add_f32 v{VL}, v{VL}, v28")
        for j in range(4): A(f"v_and_b32 v{a+j}, v29, v{VMASK+j}")
    A("s_cmp_lg_u32 s6, 0"); A("s_cbranch_scc1 L_notree2")
    mkA(VST, 1); A("s_nop 1")
    for hf in range(2):
        A(f"v_mfma_f32_16x16x32_bf16 v[{ACC+4*hf}:{ACC+4*hf+3}], v[{VA+4}:{VA+7}], v[{VVT+4*hf}:{VVT+4*hf+3}], v[{ACC+4*hf}:{ACC+4*hf+3}]")
    A("L_notree2:")
    nstep = ntile * 4
    mkA(VS, 0)
    for k in range(nstep):
        if k + 1 < nstep: mkA(VS + k + 1, (k + 1) % 2)
        else: A("s_nop 1")
        a = VA + 4 * (k % 2)
        for hf in range(2):
            i = nld + 2 * k + hf
            wait(i)
            r = (i % ring) * 4
            A(f"v_mfma_f32_16x16x32_bf16 v[{ACC+4*hf}:{ACC+4*hf+3}], v[{a}:{a+3}], a[{r}:{r+3}], v[{ACC+4*hf}:{ACC+4*hf+3}]")
            load(i + ring)
    xrow(VL, "v_add_f32")
    A(f"v_lshlrev_b32 v28, 5, v{VN}"); A(f"v_lshl_add_u32 v28, v{VG}, 3, v28")
    A("s_lshl_b32 s50, s3, 11"); A("v_add_u32 v28, s50, v28")
    A(f"v_and_b32 v29, 1, v{VLANE}"); A("v_lshlrev_b32 v29, 3, v29"); A("s_lshl_b32 s50, s3, 4"); A(f"s_add_u32 s50, s50, {ML}"); A("v_add_u32 v29, s50, v29")
    A(f"ds_write2_b32 v29, v{VM}, v{VL} offset0:0 offset1:1")
    A("v_add_u32 v30, 1024, v28")
    for hf in range(2):
        A(f"ds_write2_b32 v28, v{ACC+4*hf}, v{ACC+4*hf+2} offset0:{128*hf} offset1:{128*hf+1}")
        A(f"ds_write2_b32 v30, v{ACC+4*hf+1}, v{ACC+4*hf+3} offset0:{128*hf} offset1:{128*hf+1}")
    A("s_waitcnt lgkmcnt(0)"); A("s_barrier")
    A("s_cmp_lg_u32 s3, 0"); A("s_cbranch_scc1 L_done")
    R = 32
    A(f"v_lshlrev_b32 v28, 5, v{VLANE}")
    A(f"v_lshrrev_b32 v29, 5, v{VLANE}"); A("v_lshlrev_b32 v29, 3, v29")
    for w in range(nwaves):
        b = R + 12 * w
        A(f"ds_read_b64 v[{b+8}:{b+9}], v29 offset:{ML+16*w}")
        A(f"ds_read_b128 v[{b}:{b+3}], v28 offset:{2048*w}")
        A(f"ds_read_b128 v[{b+4}:{b+7}], v28 offset:{2048*w+16}")
        if (w + 1) % 4 == 0: A("s_waitcnt lgkmcnt(0)")
    A("s_waitcnt lgkmcnt(0)")
    def merge(nsrc, R, O):
        A(f"v_mov_b32 v{O+8}, v{R+8}")
        for w in range(1, nsrc): A(f"v_max_f32 v{O+8}, v{O+8}, v{R+12*w+8}")
        for w in range(nsrc):
            b = R + 12 * w
            A(f"v_sub_f32 v{b+10}, v{b+8}, v{O+8}"); A(f"v_mul_f32 v{b+10}, s49, v{b+10}"); A(f"v_exp_f32 v{b+10}, v{b+10}")
        A("s_nop 0")
        for w in range(nsrc):
            b = R + 12 * w
            for e in list(range(8)) + [9]:
                if w == 0: A(f"v_mul_f32 v{O+e}, v{b+10}, v{b+e}")
                else: A(f"v_fmac_f32 v{O+e}, v{b+10}, v{b+e}")
    O = 12
    merge(nwaves, R, O)
    srd(SX, 24, nwg * 4096)
    A("s_lshl_b32 s50, s2, 12")
    A(f"v_lshlrev_b32 v29, 3, v{VLANE}")
    sc = "sc1" if fused else ""
    A(f"buffer_store_dwordx4 v[{O}:{O+3}], v28, s[{SX}:{SX+3}], s50 offen {sc}")
    A(f"buffer_store_dwordx4 v[{O+4}:{O+7}], v28, s[{SX}:{SX+3}], s50 offen offset:16 {sc}")
    A(f"buffer_store_dwordx2 v[{O+8}:{O+9}], v29, s[{SX}:{SX+3}], s50 offen offset:2048 {sc}")
    def final(sc):
        A(f"s_lshl_b32 s50, s4, {12+ls}")
        for s in range(nsplit):
            b = R + 12 * s
            A(f"buffer_load_dwordx2 v[{b+8}:{b+9}], v29, s[{SX}:{SX+3}], s50 offen offset:2048 {sc}")
            A(f"buffer_load_dwordx4 v[{b}:{b+3}], v28, s[{SX}:{SX+3}], s50 offen {sc}")
            A(f"buffer_load_dwordx4 v[{b+4}:{b+7}], v28, s[{SX}:{SX+3}], s50 offen offset:16 {sc}")
            if s + 1 < nsplit: A("s_add_u32 s50, s50, 4096")
        srd(SQ, 20, 65536)
        A("v_lshrrev_b32 v30, 1, v28")
        A("s_waitcnt vmcnt(0)")
        merge(nsplit, R, O)
        A(f"v_rcp_f32 v{O+9}, v{O+9}"); A("s_nop 0")
        for e in range(8): A(f"v_mul_f32 v{O+e}, v{O+e}, v{O+9}")
        for e in range(4): A(f"v_cvt_pk_bf16_f32 v{24+e}, v{O+2*e}, v{O+2*e+1}")
        A(f"buffer_store_dwordx4 v[24:27], v30, s[{SQ}:{SQ+3}], s7 offen")
    if fused:
        A("s_waitcnt vmcnt(0)")
        A("s_lshl_b32 s50, s4, 2"); A("v_mov_b32 v30, s50"); A("v_mov_b32 v31, 1")
        A("s_mov_b64 exec, 1")
        A("global_atomic_add v31, v30, v31, s[22:23] sc0")
        A("s_waitcnt vmcnt(0)")
        A("v_readfirstlane_b32 s50, v31")
        A("s_mov_b64 exec, -1")
        A(f"s_cmp_lg_u32 s50, {nsplit-1}"); A("s_cbranch_scc1 L_done")
        final("sc1")
    A("L_done:"); A("s_endpgm")
    if not fused:
        A(".globl combine_kernel"); A(".p2align 8"); A(".type combine_kernel,@function"); A("combine_kernel:")
        A("s_cmp_ge_u32 s2, 64"); A("s_cbranch_scc1 L_done2")
        A("s_load_dwordx2 s[20:21], s[0:1], 48"); A("s_load_dwordx2 s[24:25], s[0:1], 64")
        A("v_lshlrev_b32 v28, 5, v0"); A("v_lshlrev_b32 v29, 3, v0")
        A("s_mov_b32 s4, s2"); A("s_lshl_b32 s7, s4, 10"); A(f"s_mov_b32 s49, {CEXP:#x}")
        A("s_waitcnt lgkmcnt(0)")
        srd(SX, 24, nwg * 4096)
        final("")
        A("L_done2:"); A("s_endpgm")
    def kd(name, nfv, acc):
        A(f".amdhsa_kernel {name}")
        A(f"  .amdhsa_next_free_vgpr {nfv}"); A("  .amdhsa_next_free_sgpr 56"); A(f"  .amdhsa_accum_offset {acc}")
        A("  .amdhsa_group_segment_fixed_size 0"); A("  .amdhsa_kernarg_size 72"); A("  .amdhsa_user_sgpr_count 2")
        A("  .amdhsa_user_sgpr_kernarg_segment_ptr 1"); A("  .amdhsa_system_sgpr_workgroup_id_x 1")
        A("  .amdhsa_float_denorm_mode_32 3")
        A(".end_amdhsa_kernel")
    A('.section .rodata,"a"'); A(".p2align 6")
    need = max(nv, R + 12 * max(nwaves, nsplit))
    accum = (need + 3) // 4 * 4
    kd(KN, accum + ring * 4, accum)
    if not fused:
        A(".p2align 6")
        x = (R + 12 * nsplit + 3) // 4 * 4
        kd("combine_kernel", x, x)
    return "\n".join(L) + "\n"
if __name__ == "__main__":
    name = sys.argv[1]
    kw = {}
    for x in sys.argv[2:]:
        k, v = x.split("=")
        try: v = int(v)
        except: pass
        if k == "flags": v = v.replace("+", " ").replace("none", "")
        kw[k] = v
    open(name, "w").write(gen(**kw))
```

```python
import sys
KN = "standalone__tree_speculative_verify_tree_attention_over_candidate_token_tree__decode_kernel"
HEADER = open("standalone__tree_speculative_verify_tree_attention_over_candidate_token_tree__decode.s.ref").read().split("; Override launch geometry")[0]
CEXP = 0x3db8aa3b
import struct
def f2u(x): return struct.unpack("<I", struct.pack("<f", x))[0]
CEXP = f2u(0.0625 * 1.4426950408889634)

def gen(nsplit=4, nwaves=4, ring=32, flags="nt", kflags=None, vflags=None, fused=1, lds=0, stamp=0):
    nwg = 64 * nsplit
    if kflags is None: kflags = flags
    if vflags is None: vflags = flags
    kpw = 4096 // (nsplit * nwaves)
    ntile = kpw // 16
    nld = ntile * 8
    L = []; A = L.append
    ML = nwaves * 2048
    ldsb = max(lds, ML + nwaves * 16)
    A(HEADER.rstrip())
    if fused:
        A(f"; @launch grid=({nwg},1,1) block=({64*nwaves},1,1) lds={ldsb}")
    else:
        A(f"; @launch kernel={KN} grid=({nwg},1,1) block=({64*nwaves},1,1) lds={ldsb}")
        A(f"; @launch kernel=combine_kernel grid=(64,1,1) block=(64,1,1) lds=0")
    A('.amdgcn_target "amdgcn-amd-amdhsa--gfx950"')
    A(".text"); A(f".globl {KN}"); A(".p2align 8"); A(f".type {KN},@function"); A(f"{KN}:")
    VLANE, VN, VG, VOK, VOV = 1, 2, 3, 4, 5
    VMASK = 6
    ACC = 12
    VL, VM = 10, 11
    VA = 20
    VT = 28
    VQ = 32
    VVT = 64
    VST = 72
    VS = 76
    nS = max(ntile * 4, 32)
    nv = VS + nS
    assert nv <= 256
    accum = (nv + 3) // 4 * 4
    assert ring * 4 <= 256
    SK, SV, SQ, SX = 28, 32, 36, 40
    A(f"s_cmp_ge_u32 s2, {nwg}"); A("s_cbranch_scc1 L_done")
    A("s_load_dwordx16 s[8:23], s[0:1], 0")
    A("s_load_dwordx2 s[24:25], s[0:1], 64")
    A("v_lshrrev_b32 v28, 6, v0"); A(f"v_and_b32 v{VLANE}, 63, v0")
    A(f"v_and_b32 v{VN}, 15, v0")
    A("v_readfirstlane_b32 s3, v28")
    A(f"v_lshrrev_b32 v{VG}, 4, v{VLANE}")
    A(f"v_lshlrev_b32 v{VOK}, 9, v{VN}"); A(f"v_lshl_add_u32 v{VOK}, v{VG}, 4, v{VOK}")
    A(f"v_lshlrev_b32 v{VOV}, 11, v{VG}"); A(f"v_lshl_add_u32 v{VOV}, v{VN}, 4, v{VOV}")
    A(f"v_and_b32 v28, 1, v{VN}"); A("v_lshlrev_b32 v28, 9, v28"); A(f"v_lshl_add_u32 v28, v{VG}, 4, v28")
    A(f"v_lshlrev_b32 v29, 4, v{VG}")
    A(f"v_lshlrev_b32 v30, 4, v{VN}")
    import math
    ls = int(math.log2(nsplit))
    A(f"s_lshr_b32 s4, s2, {ls}")
    A(f"s_mul_i32 s5, s2, {nwaves}"); A("s_add_u32 s5, s5, s3")
    A(f"s_and_b32 s6, s5, {nsplit*nwaves-1}")
    A(f"s_mul_i32 s5, s5, {kpw*512}")
    A("s_lshl_b32 s7, s4, 10")
    A("s_lshl_b32 s26, s4, 9")
    A("s_waitcnt lgkmcnt(0)")
    def srd(d, b, n):
        A(f"s_mov_b32 s{d}, s{b}"); A(f"s_mov_b32 s{d+1}, s{b+1}"); A(f"s_mov_b32 s{d+2}, {n}"); A(f"s_mov_b32 s{d+3}, 0x20000")
    srd(SK, 10, "0x8000000"); srd(SQ, 8, 65536); srd(SV, 12, "0x8000000")
    A("s_cmp_lg_u32 s6, 0"); A("s_cbranch_scc1 L_notree0")
    srd(SX, 14, 32768)
    for j in range(8):
        A(f"buffer_load_dwordx4 v[{VS+4*j}:{VS+4*j+3}], v29, s[{SX}:{SX+3}], s26 offen offset:{64*j}")
    srd(SX + 4, 16, 32768)
    for hf in range(2):
        A(f"buffer_load_dwordx4 v[{VVT+4*hf}:{VVT+4*hf+3}], v30, s[{SX+4}:{SX+7}], s26 offen offset:{256*hf}")
    A("s_lshr_b32 s27, s4, 4"); A("s_lshl_b32 s27, s27, 2")
    A("s_load_dword s27, s[18:19], s27")
    A("L_notree0:")
    for j in range(8):
        A(f"buffer_load_dwordx4 v[{VQ+4*j}:{VQ+4*j+3}], v28, s[{SQ}:{SQ+3}], s7 offen offset:{64*j}")
    seq = [("k", t, j) for t in range(ntile) for j in range(8)] + [("v", t, j) for t in range(ntile) for j in range(8)]
    n = len(seq)
    cur = {}
    def load(i):
        if i >= n: return
        tn, t, j = seq[i]
        so = t * 8192
        if cur.get("so") != so:
            A(f"s_add_u32 s44+4, s5, {so}".replace("s44+4", "s48")); cur["so"] = so
        r = (i % ring) * 4
        if tn == "k":
            A(f"buffer_load_dwordx4 a[{r}:{r+3}], v{VOK}, s[{SK}:{SK+3}], s48 offen offset:{64*j} {kflags}")
        else:
            A(f"buffer_load_dwordx4 a[{r}:{r+3}], v{VOV}, s[{SV}:{SV+3}], s48 offen offset:{(j//2)*512+(j%2)*256} {vflags}")
    for i in range(ring): load(i)
    A(f"v_lshrrev_b32 v29, 1, v{VN}")
    A("v_and_b32 v30, 1, v29")
    A("v_lshlrev_b32 v30, 4, v30")
    A("v_mov_b32 v31, 0xffff"); A("v_lshlrev_b32 v30, v30, v31")
    A("v_lshrrev_b32 v29, 1, v29")
    for j in range(4):
        A(f"v_cmp_eq_u32 vcc, {j}, v29"); A("s_nop 1"); A(f"v_cndmask_b32 v{VMASK+j}, 0, v30, vcc")
    for r in range(8): A(f"v_mov_b32 v{ACC+r}, 0")
    A(f"v_mov_b32 v{VL}, 0"); A(f"v_mov_b32 v{VM}, 0xff800000")
    A(f"s_mov_b32 s49, {CEXP:#x}")
    A(f"s_waitcnt vmcnt({ring})" if ring < 64 else "")
    A("s_cmp_lg_u32 s6, 0"); A("s_cbranch_scc1 L_notree1")
    for j in range(8):
        c = "0" if j == 0 else f"v[{VST}:{VST+3}]"
        A(f"v_mfma_f32_16x16x32_bf16 v[{VST}:{VST+3}], v[{VS+4*j}:{VS+4*j+3}], v[{VQ+4*j}:{VQ+4*j+3}], {c}")
    A("s_waitcnt lgkmcnt(0)")
    A("s_bitcmp1_b32 s4, 3")
    A("s_cselect_b32 s50, 0, 16"); A("s_lshl_b32 s27, s27, s50"); A("s_and_b32 s27, s27, 0xffff0000")
    A("v_mov_b32 v29, s27"); A("v_sub_f32 v29, 1.0, v29")
    A(f"v_mul_f32 v29, {f2u(-1.6e10):#x}, v29")
    A(f"v_cmp_gt_u32 vcc, 16, v{VLANE}")
    A("v_mov_b32 v30, 0xff800000")
    A("s_nop 4")
    A(f"v_add_f32 v{VST}, v{VST}, v29")
    A(f"v_cndmask_b32 v{VST}, v30, v{VST}, vcc")
    A(f"v_mov_b32 v{VM}, v{VST}")
    A("L_notree1:")
    def wait(i):
        issued = min(n, i + ring)
        A(f"s_waitcnt vmcnt({issued - i - 1})")
    for i in range(nld):
        t, j = divmod(i, 8)
        wait(i)
        r = (i % ring) * 4
        s = VS + 4 * t
        c = "0" if j == 0 else f"v[{s}:{s+3}]"
        A(f"v_mfma_f32_16x16x32_bf16 v[{s}:{s+3}], a[{r}:{r+3}], v[{VQ+4*j}:{VQ+4*j+3}], {c}")
        load(i + ring)
        if j == 4 and t > 0:
            s = VS + 4 * (t - 1)
            A(f"v_max3_f32 v{VM}, v{s}, v{s+1}, v{VM}"); A(f"v_max3_f32 v{VM}, v{s+2}, v{s+3}, v{VM}")
    A("s_nop 7")
    s = VS + 4 * (ntile - 1)
    A(f"v_max3_f32 v{VM}, v{s}, v{s+1}, v{VM}"); A(f"v_max3_f32 v{VM}, v{s+2}, v{s+3}, v{VM}")
    def xrow(reg, op):
        A(f"v_mov_b32 v28, v{reg}"); A("s_nop 1"); A(f"v_permlane32_swap_b32 v{reg}, v28"); A("s_nop 1"); A(f"{op} v{reg}, v{reg}, v28")
        A(f"v_mov_b32 v28, v{reg}"); A("s_nop 1"); A(f"v_permlane16_swap_b32 v{reg}, v28"); A("s_nop 1"); A(f"{op} v{reg}, v{reg}, v28")
    xrow(VM, "v_max_f32")
    def mkA(sreg, buf):
        a = VA + 4 * buf
        A(f"v_sub_f32 v28, v{sreg}, v{VM}"); A("v_mul_f32 v28, s49, v28"); A("v_exp_f32 v28, v28"); A("s_nop 0")
        A(f"v_cvt_pk_bf16_f32 v29, v28, v28"); A(f"v_add_f32 v{VL}, v{VL}, v28")
        for j in range(4): A(f"v_and_b32 v{a+j}, v29, v{VMASK+j}")
    A("s_cmp_lg_u32 s6, 0"); A("s_cbranch_scc1 L_notree2")
    mkA(VST, 1); A("s_nop 1")
    for hf in range(2):
        A(f"v_mfma_f32_16x16x32_bf16 v[{ACC+4*hf}:{ACC+4*hf+3}], v[{VA+4}:{VA+7}], v[{VVT+4*hf}:{VVT+4*hf+3}], v[{ACC+4*hf}:{ACC+4*hf+3}]")
    A("L_notree2:")
    nstep = ntile * 4
    mkA(VS, 0)
    for k in range(nstep):
        if k + 1 < nstep: mkA(VS + k + 1, (k + 1) % 2)
        else: A("s_nop 1")
        a = VA + 4 * (k % 2)
        for hf in range(2):
            i = nld + 2 * k + hf
            wait(i)
            r = (i % ring) * 4
            A(f"v_mfma_f32_16x16x32_bf16 v[{ACC+4*hf}:{ACC+4*hf+3}], v[{a}:{a+3}], a[{r}:{r+3}], v[{ACC+4*hf}:{ACC+4*hf+3}]")
            load(i + ring)
    xrow(VL, "v_add_f32")
    A(f"v_lshlrev_b32 v28, 5, v{VN}"); A(f"v_lshl_add_u32 v28, v{VG}, 3, v28")
    A("s_lshl_b32 s50, s3, 11"); A("v_add_u32 v28, s50, v28")
    A(f"v_and_b32 v29, 1, v{VLANE}"); A("v_lshlrev_b32 v29, 3, v29"); A("s_lshl_b32 s50, s3, 4"); A(f"s_add_u32 s50, s50, {ML}"); A("v_add_u32 v29, s50, v29")
    A(f"ds_write2_b32 v29, v{VM}, v{VL} offset0:0 offset1:1")
    A("v_add_u32 v30, 1024, v28")
    for hf in range(2):
        A(f"ds_write2_b32 v28, v{ACC+4*hf}, v{ACC+4*hf+2} offset0:{128*hf} offset1:{128*hf+1}")
        A(f"ds_write2_b32 v30, v{ACC+4*hf+1}, v{ACC+4*hf+3} offset0:{128*hf} offset1:{128*hf+1}")
    A("s_waitcnt lgkmcnt(0)"); A("s_barrier")
    A("s_cmp_lg_u32 s3, 0"); A("s_cbranch_scc1 L_done")
    R = 32
    A(f"v_lshlrev_b32 v28, 5, v{VLANE}")
    A(f"v_lshrrev_b32 v29, 5, v{VLANE}"); A("v_lshlrev_b32 v29, 3, v29")
    for w in range(nwaves):
        b = R + 12 * w
        A(f"ds_read_b64 v[{b+8}:{b+9}], v29 offset:{ML+16*w}")
        A(f"ds_read_b128 v[{b}:{b+3}], v28 offset:{2048*w}")
        A(f"ds_read_b128 v[{b+4}:{b+7}], v28 offset:{2048*w+16}")
        if (w + 1) % 4 == 0: A("s_waitcnt lgkmcnt(0)")
    A("s_waitcnt lgkmcnt(0)")
    def merge(nsrc, R, O):
        A(f"v_mov_b32 v{O+8}, v{R+8}")
        for w in range(1, nsrc): A(f"v_max_f32 v{O+8}, v{O+8}, v{R+12*w+8}")
        for w in range(nsrc):
            b = R + 12 * w
            A(f"v_sub_f32 v{b+10}, v{b+8}, v{O+8}"); A(f"v_mul_f32 v{b+10}, s49, v{b+10}"); A(f"v_exp_f32 v{b+10}, v{b+10}")
        A("s_nop 0")
        for w in range(nsrc):
            b = R + 12 * w
            for e in list(range(8)) + [9]:
                if w == 0: A(f"v_mul_f32 v{O+e}, v{b+10}, v{b+e}")
                else: A(f"v_fmac_f32 v{O+e}, v{b+10}, v{b+e}")
    O = 12
    merge(nwaves, R, O)
    srd(SX, 24, nwg * 4096)
    A("s_lshl_b32 s50, s2, 12")
    A(f"v_lshlrev_b32 v29, 3, v{VLANE}")
    sc = "sc1" if fused else ""
    A(f"buffer_store_dwordx4 v[{O}:{O+3}], v28, s[{SX}:{SX+3}], s50 offen {sc}")
    A(f"buffer_store_dwordx4 v[{O+4}:{O+7}], v28, s[{SX}:{SX+3}], s50 offen offset:16 {sc}")
    A(f"buffer_store_dwordx2 v[{O+8}:{O+9}], v29, s[{SX}:{SX+3}], s50 offen offset:2048 {sc}")
    def final(sc):
        A(f"s_lshl_b32 s50, s4, {12+ls}")
        for s in range(nsplit):
            b = R + 12 * s
            A(f"buffer_load_dwordx2 v[{b+8}:{b+9}], v29, s[{SX}:{SX+3}], s50 offen offset:2048 {sc}")
            A(f"buffer_load_dwordx4 v[{b}:{b+3}], v28, s[{SX}:{SX+3}], s50 offen {sc}")
            A(f"buffer_load_dwordx4 v[{b+4}:{b+7}], v28, s[{SX}:{SX+3}], s50 offen offset:16 {sc}")
            if s + 1 < nsplit: A("s_add_u32 s50, s50, 4096")
        srd(SQ, 20, 65536)
        A("v_lshrrev_b32 v30, 1, v28")
        A("s_waitcnt vmcnt(0)")
        merge(nsplit, R, O)
        A(f"v_rcp_f32 v{O+9}, v{O+9}"); A("s_nop 0")
        for e in range(8): A(f"v_mul_f32 v{O+e}, v{O+e}, v{O+9}")
        for e in range(4): A(f"v_cvt_pk_bf16_f32 v{24+e}, v{O+2*e}, v{O+2*e+1}")
        A(f"buffer_store_dwordx4 v[24:27], v30, s[{SQ}:{SQ+3}], s7 offen")
    if fused:
        A("s_waitcnt vmcnt(0)")
        A("s_lshl_b32 s50, s4, 2"); A("v_mov_b32 v30, s50"); A("v_mov_b32 v31, 1")
        A("s_mov_b64 exec, 1")
        A("global_atomic_add v31, v30, v31, s[22:23] sc0")
        A("s_waitcnt vmcnt(0)")
        A("v_readfirstlane_b32 s50, v31")
        A("s_mov_b64 exec, -1")
        A(f"s_cmp_lg_u32 s50, {nsplit-1}"); A("s_cbranch_scc1 L_done")
        final("sc1")
    A("L_done:"); A("s_endpgm")
    if not fused:
        A(".globl combine_kernel"); A(".p2align 8"); A(".type combine_kernel,@function"); A("combine_kernel:")
        A("s_cmp_ge_u32 s2, 64"); A("s_cbranch_scc1 L_done2")
        A("s_load_dwordx2 s[20:21], s[0:1], 48"); A("s_load_dwordx2 s[24:25], s[0:1], 64")
        A("v_lshlrev_b32 v28, 5, v0"); A("v_lshlrev_b32 v29, 3, v0")
        A("s_mov_b32 s4, s2"); A("s_lshl_b32 s7, s4, 10"); A(f"s_mov_b32 s49, {CEXP:#x}")
        A("s_waitcnt lgkmcnt(0)")
        srd(SX, 24, nwg * 4096)
        final("")
        A("L_done2:"); A("s_endpgm")
    def kd(name, nfv, acc):
        A(f".amdhsa_kernel {name}")
        A(f"  .amdhsa_next_free_vgpr {nfv}"); A("  .amdhsa_next_free_sgpr 56"); A(f"  .amdhsa_accum_offset {acc}")
        A("  .amdhsa_group_segment_fixed_size 0"); A("  .amdhsa_kernarg_size 72"); A("  .amdhsa_user_sgpr_count 2")
        A("  .amdhsa_user_sgpr_kernarg_segment_ptr 1"); A("  .amdhsa_system_sgpr_workgroup_id_x 1")
        A("  .amdhsa_float_denorm_mode_32 3")
        A(".end_amdhsa_kernel")
    A('.section .rodata,"a"'); A(".p2align 6")
    need = max(nv, R + 12 * max(nwaves, nsplit))
    accum = (need + 3) // 4 * 4
    kd(KN, accum + ring * 4, accum)
    if not fused:
        A(".p2align 6")
        x = (R + 12 * nsplit + 3) // 4 * 4
        kd("combine_kernel", x, x)
    return "\n".join(L) + "\n"
if __name__ == "__main__":
    name = sys.argv[1]
    kw = {}
    for x in sys.argv[2:]:
        k, v = x.split("=")
        try: v = int(v)
        except: pass
        if k.endswith("flags"): v = v.replace("+", " ").replace("none", "")
        kw[k] = v
    open(name, "w").write(gen(**kw))
```

```python
import sys
KN = "standalone__tree_speculative_verify_tree_attention_over_candidate_token_tree__decode_kernel"
HEADER = open("standalone__tree_speculative_verify_tree_attention_over_candidate_token_tree__decode.s.ref").read().split("; Override launch geometry")[0]
CEXP = 0x3db8aa3b
import struct
def f2u(x): return struct.unpack("<I", struct.pack("<f", x))[0]
CEXP = f2u(0.0625 * 1.4426950408889634)

def gen(nsplit=4, nwaves=4, ring=32, flags="nt", kflags=None, vflags=None, fused=1, lds=0, stamp=0, extra=0, xflags="nt", sel=-1, mult=10, selmin=0):
    nwg = 64 * nsplit
    if kflags is None: kflags = flags
    if vflags is None: vflags = flags
    kpw = 4096 // (nsplit * nwaves)
    ntile = kpw // 16
    nld = ntile * 8
    L = []; A = L.append
    ML = nwaves * 2048
    ldsb = max(lds, ML + nwaves * 16)
    A(HEADER.rstrip())
    if fused:
        A(f"; @launch grid=({nwg},1,1) block=({64*nwaves},1,1) lds={ldsb}")
    else:
        A(f"; @launch kernel={KN} grid=({nwg},1,1) block=({64*nwaves},1,1) lds={ldsb}")
        A(f"; @launch kernel=combine_kernel grid=(64,1,1) block=(64,1,1) lds=0")
        if sel >= 0: A(f"; @launch kernel=diag_kernel grid=(1,1,1) block=(64,1,1) lds=0")
    A('.amdgcn_target "amdgcn-amd-amdhsa--gfx950"')
    A(".text"); A(f".globl {KN}"); A(".p2align 8"); A(f".type {KN},@function"); A(f"{KN}:")
    VLANE, VN, VG, VOK, VOV = 1, 2, 3, 4, 5
    VMASK = 6
    ACC = 12
    VL, VM = 10, 11
    VA = 20
    VT = 28
    VQ = 32
    VVT = 64
    VST = 72
    VS = 76
    nS = max(ntile * 4, 32)
    nv = VS + nS
    assert nv <= 256
    accum = (nv + 3) // 4 * 4
    assert ring * 4 <= 256
    SK, SV, SQ, SX = 28, 32, 36, 40
    A(f"s_cmp_ge_u32 s2, {nwg}"); A("s_cbranch_scc1 L_done")
    def st(i):
        if stamp: A(f"s_memrealtime s[{60+2*i}:{61+2*i}]")
    st(0)
    A("s_load_dwordx16 s[8:23], s[0:1], 0")
    A("s_load_dwordx2 s[24:25], s[0:1], 64")
    A("v_lshrrev_b32 v28, 6, v0"); A(f"v_and_b32 v{VLANE}, 63, v0")
    A(f"v_and_b32 v{VN}, 15, v0")
    A("v_readfirstlane_b32 s3, v28")
    A(f"v_lshrrev_b32 v{VG}, 4, v{VLANE}")
    A(f"v_lshlrev_b32 v{VOK}, 9, v{VN}"); A(f"v_lshl_add_u32 v{VOK}, v{VG}, 4, v{VOK}")
    A(f"v_lshlrev_b32 v{VOV}, 11, v{VG}"); A(f"v_lshl_add_u32 v{VOV}, v{VN}, 4, v{VOV}")
    A(f"v_and_b32 v28, 1, v{VN}"); A("v_lshlrev_b32 v28, 9, v28"); A(f"v_lshl_add_u32 v28, v{VG}, 4, v28")
    A(f"v_lshlrev_b32 v29, 4, v{VG}")
    A(f"v_lshlrev_b32 v30, 4, v{VN}")
    import math
    ls = int(math.log2(nsplit))
    A(f"s_lshr_b32 s4, s2, {ls}")
    A(f"s_mul_i32 s5, s2, {nwaves}"); A("s_add_u32 s5, s5, s3")
    A(f"s_and_b32 s6, s5, {nsplit*nwaves-1}")
    A(f"s_mul_i32 s5, s5, {kpw*512}")
    A("s_lshl_b32 s7, s4, 10")
    A("s_lshl_b32 s26, s4, 9")
    A("s_waitcnt lgkmcnt(0)")
    st(1)
    def srd(d, b, n):
        A(f"s_mov_b32 s{d}, s{b}"); A(f"s_mov_b32 s{d+1}, s{b+1}"); A(f"s_mov_b32 s{d+2}, {n}"); A(f"s_mov_b32 s{d+3}, 0x20000")
    srd(SK, 10, "0x8000000"); srd(SQ, 8, 65536); srd(SV, 12, "0x8000000")
    A("s_cmp_lg_u32 s6, 0"); A("s_cbranch_scc1 L_notree0")
    srd(SX, 14, 32768)
    for j in range(8):
        A(f"buffer_load_dwordx4 v[{VS+4*j}:{VS+4*j+3}], v29, s[{SX}:{SX+3}], s26 offen offset:{64*j}")
    srd(SX + 4, 16, 32768)
    for hf in range(2):
        A(f"buffer_load_dwordx4 v[{VVT+4*hf}:{VVT+4*hf+3}], v30, s[{SX+4}:{SX+7}], s26 offen offset:{256*hf}")
    A("s_lshr_b32 s27, s4, 4"); A("s_lshl_b32 s27, s27, 2")
    A("s_load_dword s27, s[18:19], s27")
    A("L_notree0:")
    for j in range(8):
        A(f"buffer_load_dwordx4 v[{VQ+4*j}:{VQ+4*j+3}], v28, s[{SQ}:{SQ+3}], s7 offen offset:{64*j}")
    seq = [("k", t, j) for t in range(ntile) for j in range(8)] + [("v", t, j) for t in range(ntile) for j in range(8)]
    n = len(seq)
    cur = {}
    def load(i):
        if i >= n: return
        tn, t, j = seq[i]
        so = t * 8192
        if cur.get("so") != so:
            A(f"s_add_u32 s44+4, s5, {so}".replace("s44+4", "s48")); cur["so"] = so
        r = (i % ring) * 4
        if tn == "k":
            A(f"buffer_load_dwordx4 a[{r}:{r+3}], v{VOK}, s[{SK}:{SK+3}], s48 offen offset:{64*j} {kflags}")
        else:
            A(f"buffer_load_dwordx4 a[{r}:{r+3}], v{VOV}, s[{SV}:{SV+3}], s48 offen offset:{(j//2)*512+(j%2)*256} {vflags}")
    for i in range(ring): load(i)
    A(f"v_lshrrev_b32 v29, 1, v{VN}")
    A("v_and_b32 v30, 1, v29")
    A("v_lshlrev_b32 v30, 4, v30")
    A("v_mov_b32 v31, 0xffff"); A("v_lshlrev_b32 v30, v30, v31")
    A("v_lshrrev_b32 v29, 1, v29")
    for j in range(4):
        A(f"v_cmp_eq_u32 vcc, {j}, v29"); A("s_nop 1"); A(f"v_cndmask_b32 v{VMASK+j}, 0, v30, vcc")
    for r in range(8): A(f"v_mov_b32 v{ACC+r}, 0")
    A(f"v_mov_b32 v{VL}, 0"); A(f"v_mov_b32 v{VM}, 0xff800000")
    A(f"s_mov_b32 s49, {CEXP:#x}")
    A(f"s_waitcnt vmcnt({ring})" if ring < 64 else "")
    st(2)
    A("s_cmp_lg_u32 s6, 0"); A("s_cbranch_scc1 L_notree1")
    for j in range(8):
        c = "0" if j == 0 else f"v[{VST}:{VST+3}]"
        A(f"v_mfma_f32_16x16x32_bf16 v[{VST}:{VST+3}], v[{VS+4*j}:{VS+4*j+3}], v[{VQ+4*j}:{VQ+4*j+3}], {c}")
    A("s_waitcnt lgkmcnt(0)")
    A("s_bitcmp1_b32 s4, 3")
    A("s_cselect_b32 s50, 0, 16"); A("s_lshl_b32 s27, s27, s50"); A("s_and_b32 s27, s27, 0xffff0000")
    A("v_mov_b32 v29, s27"); A("v_sub_f32 v29, 1.0, v29")
    A(f"v_mul_f32 v29, {f2u(-1.6e10):#x}, v29")
    A(f"v_cmp_gt_u32 vcc, 16, v{VLANE}")
    A("v_mov_b32 v30, 0xff800000")
    A("s_nop 4")
    A(f"v_add_f32 v{VST}, v{VST}, v29")
    A(f"v_cndmask_b32 v{VST}, v30, v{VST}, vcc")
    A(f"v_mov_b32 v{VM}, v{VST}")
    A("L_notree1:")
    def wait(i):
        issued = min(n, i + ring)
        A(f"s_waitcnt vmcnt({issued - i - 1})")
    for i in range(nld):
        t, j = divmod(i, 8)
        wait(i)
        r = (i % ring) * 4
        s = VS + 4 * t
        c = "0" if j == 0 else f"v[{s}:{s+3}]"
        A(f"v_mfma_f32_16x16x32_bf16 v[{s}:{s+3}], a[{r}:{r+3}], v[{VQ+4*j}:{VQ+4*j+3}], {c}")
        load(i + ring)
        if j == 4 and t > 0:
            s = VS + 4 * (t - 1)
            A(f"v_max3_f32 v{VM}, v{s}, v{s+1}, v{VM}"); A(f"v_max3_f32 v{VM}, v{s+2}, v{s+3}, v{VM}")
    st(3)
    A("s_nop 7")
    s = VS + 4 * (ntile - 1)
    A(f"v_max3_f32 v{VM}, v{s}, v{s+1}, v{VM}"); A(f"v_max3_f32 v{VM}, v{s+2}, v{s+3}, v{VM}")
    def xrow(reg, op):
        A(f"v_mov_b32 v28, v{reg}"); A("s_nop 1"); A(f"v_permlane32_swap_b32 v{reg}, v28"); A("s_nop 1"); A(f"{op} v{reg}, v{reg}, v28")
        A(f"v_mov_b32 v28, v{reg}"); A("s_nop 1"); A(f"v_permlane16_swap_b32 v{reg}, v28"); A("s_nop 1"); A(f"{op} v{reg}, v{reg}, v28")
    xrow(VM, "v_max_f32")
    def mkA(sreg, buf):
        a = VA + 4 * buf
        A(f"v_sub_f32 v28, v{sreg}, v{VM}"); A("v_mul_f32 v28, s49, v28"); A("v_exp_f32 v28, v28"); A("s_nop 0")
        A(f"v_cvt_pk_bf16_f32 v29, v28, v28"); A(f"v_add_f32 v{VL}, v{VL}, v28")
        for j in range(4): A(f"v_and_b32 v{a+j}, v29, v{VMASK+j}")
    A("s_cmp_lg_u32 s6, 0"); A("s_cbranch_scc1 L_notree2")
    mkA(VST, 1); A("s_nop 1")
    for hf in range(2):
        A(f"v_mfma_f32_16x16x32_bf16 v[{ACC+4*hf}:{ACC+4*hf+3}], v[{VA+4}:{VA+7}], v[{VVT+4*hf}:{VVT+4*hf+3}], v[{ACC+4*hf}:{ACC+4*hf+3}]")
    A("L_notree2:")
    nstep = ntile * 4
    mkA(VS, 0)
    for k in range(nstep):
        if k + 1 < nstep: mkA(VS + k + 1, (k + 1) % 2)
        else: A("s_nop 1")
        a = VA + 4 * (k % 2)
        for hf in range(2):
            i = nld + 2 * k + hf
            wait(i)
            r = (i % ring) * 4
            A(f"v_mfma_f32_16x16x32_bf16 v[{ACC+4*hf}:{ACC+4*hf+3}], v[{a}:{a+3}], a[{r}:{r+3}], v[{ACC+4*hf}:{ACC+4*hf+3}]")
            load(i + ring)
    if extra:
        srd(SX + 4, 24, "0x20000000")
        A(f"s_mul_i32 s51, s2, {nwaves}"); A("s_add_u32 s51, s51, s3"); A(f"s_mul_i32 s51, s51, {extra*1024}")
        A("s_add_u32 s51, s51, 0x4000000")
        A(f"v_lshlrev_b32 v31, 4, v{VLANE}")
        for i in range(extra):
            if i >= ring: A(f"s_waitcnt vmcnt({ring-1})")
            r = (i % ring) * 4
            A(f"buffer_load_dwordx4 a[{r}:{r+3}], v31, s[{SX+4}:{SX+7}], s51 offen {xflags}")
            A("s_add_u32 s51, s51, 1024")
        A("s_waitcnt vmcnt(0)")
    st(4)
    xrow(VL, "v_add_f32")
    A(f"v_lshlrev_b32 v28, 5, v{VN}"); A(f"v_lshl_add_u32 v28, v{VG}, 3, v28")
    A("s_lshl_b32 s50, s3, 11"); A("v_add_u32 v28, s50, v28")
    A(f"v_and_b32 v29, 1, v{VLANE}"); A("v_lshlrev_b32 v29, 3, v29"); A("s_lshl_b32 s50, s3, 4"); A(f"s_add_u32 s50, s50, {ML}"); A("v_add_u32 v29, s50, v29")
    A(f"ds_write2_b32 v29, v{VM}, v{VL} offset0:0 offset1:1")
    A("v_add_u32 v30, 1024, v28")
    for hf in range(2):
        A(f"ds_write2_b32 v28, v{ACC+4*hf}, v{ACC+4*hf+2} offset0:{128*hf} offset1:{128*hf+1}")
        A(f"ds_write2_b32 v30, v{ACC+4*hf+1}, v{ACC+4*hf+3} offset0:{128*hf} offset1:{128*hf+1}")
    A("s_waitcnt lgkmcnt(0)"); A("s_barrier")
    st(5); st(6); st(7)
    A("s_cmp_lg_u32 s3, 0"); A("s_cbranch_scc1 L_fin")
    R = 32
    A(f"v_lshlrev_b32 v28, 5, v{VLANE}")
    A(f"v_lshrrev_b32 v29, 5, v{VLANE}"); A("v_lshlrev_b32 v29, 3, v29")
    for w in range(nwaves):
        b = R + 12 * w
        A(f"ds_read_b64 v[{b+8}:{b+9}], v29 offset:{ML+16*w}")
        A(f"ds_read_b128 v[{b}:{b+3}], v28 offset:{2048*w}")
        A(f"ds_read_b128 v[{b+4}:{b+7}], v28 offset:{2048*w+16}")
        if (w + 1) % 4 == 0: A("s_waitcnt lgkmcnt(0)")
    A("s_waitcnt lgkmcnt(0)")
    def merge(nsrc, R, O):
        A(f"v_mov_b32 v{O+8}, v{R+8}")
        for w in range(1, nsrc): A(f"v_max_f32 v{O+8}, v{O+8}, v{R+12*w+8}")
        for w in range(nsrc):
            b = R + 12 * w
            A(f"v_sub_f32 v{b+10}, v{b+8}, v{O+8}"); A(f"v_mul_f32 v{b+10}, s49, v{b+10}"); A(f"v_exp_f32 v{b+10}, v{b+10}")
        A("s_nop 0")
        for w in range(nsrc):
            b = R + 12 * w
            for e in list(range(8)) + [9]:
                if w == 0: A(f"v_mul_f32 v{O+e}, v{b+10}, v{b+e}")
                else: A(f"v_fmac_f32 v{O+e}, v{b+10}, v{b+e}")
    O = 12
    merge(nwaves, R, O)
    srd(SX, 24, nwg * 4096)
    A("s_lshl_b32 s50, s2, 12")
    A(f"v_lshlrev_b32 v29, 3, v{VLANE}")
    sc = "sc1" if fused else ""
    A(f"buffer_store_dwordx4 v[{O}:{O+3}], v28, s[{SX}:{SX+3}], s50 offen {sc}")
    A(f"buffer_store_dwordx4 v[{O+4}:{O+7}], v28, s[{SX}:{SX+3}], s50 offen offset:16 {sc}")
    A(f"buffer_store_dwordx2 v[{O+8}:{O+9}], v29, s[{SX}:{SX+3}], s50 offen offset:2048 {sc}")
    def final(sc):
        A(f"s_lshl_b32 s50, s4, {12+ls}")
        for s in range(nsplit):
            b = R + 12 * s
            A(f"buffer_load_dwordx2 v[{b+8}:{b+9}], v29, s[{SX}:{SX+3}], s50 offen offset:2048 {sc}")
            A(f"buffer_load_dwordx4 v[{b}:{b+3}], v28, s[{SX}:{SX+3}], s50 offen {sc}")
            A(f"buffer_load_dwordx4 v[{b+4}:{b+7}], v28, s[{SX}:{SX+3}], s50 offen offset:16 {sc}")
            if s + 1 < nsplit: A("s_add_u32 s50, s50, 4096")
        srd(SQ, 20, 65536)
        A("v_lshrrev_b32 v30, 1, v28")
        A("s_waitcnt vmcnt(0)")
        merge(nsplit, R, O)
        A(f"v_rcp_f32 v{O+9}, v{O+9}"); A("s_nop 0")
        for e in range(8): A(f"v_mul_f32 v{O+e}, v{O+e}, v{O+9}")
        for e in range(4): A(f"v_cvt_pk_bf16_f32 v{24+e}, v{O+2*e}, v{O+2*e+1}")
        A(f"buffer_store_dwordx4 v[24:27], v30, s[{SQ}:{SQ+3}], s7 offen")
    if stamp and not fused:
        A("s_waitcnt vmcnt(0)"); st(6); st(7)
    if fused:
        A("s_waitcnt vmcnt(0)"); st(6)
        A("s_lshl_b32 s50, s4, 2"); A("v_mov_b32 v30, s50"); A("v_mov_b32 v31, 1")
        A("s_mov_b64 exec, 1")
        A("global_atomic_add v31, v30, v31, s[22:23] sc0")
        A("s_waitcnt vmcnt(0)")
        A("v_readfirstlane_b32 s50, v31")
        A("s_mov_b64 exec, -1")
        st(7)
        A(f"s_cmp_lg_u32 s50, {nsplit-1}"); A("s_cbranch_scc1 L_fin")
        final("sc1")
        if stamp: A("s_waitcnt vmcnt(0)"); st(7)
    A("L_fin:")
    if stamp:
        A("s_waitcnt lgkmcnt(0)")
        srd(SX, 24, "0x20000000")
        A(f"s_mul_i32 s51, s2, {nwaves}"); A("s_add_u32 s51, s51, s3"); A("s_lshl_b32 s51, s51, 5"); A("s_add_u32 s51, s51, 0x1000000")
        for i in range(8): A(f"v_mov_b32 v{32+i}, s{60+2*i}")
        A("v_mov_b32 v31, 0"); A("s_mov_b64 exec, 1")
        A(f"buffer_store_dwordx4 v[32:35], v31, s[{SX}:{SX+3}], s51 offen")
        A(f"buffer_store_dwordx4 v[36:39], v31, s[{SX}:{SX+3}], s51 offen offset:16")
    A("L_done:"); A("s_endpgm")
    if sel >= 0:
        nw = nwg * nwaves
        per = nw // 64
        A(".globl diag_kernel"); A(".p2align 8"); A(".type diag_kernel,@function"); A("diag_kernel:")
        A("s_cmp_ge_u32 s2, 1"); A("s_cbranch_scc1 L_done3")
        A("s_load_dwordx2 s[24:25], s[0:1], 64")
        A("v_lshlrev_b32 v1, 5, v0")
        A("s_waitcnt lgkmcnt(0)")
        srd(SX, 24, "0x20000000")
        A("s_mov_b32 s51, 0x1000000")
        for i in range(per):
            A(f"buffer_load_dword v{4+2*i}, v1, s[{SX}:{SX+3}], s51 offen")
            A(f"buffer_load_dword v{5+2*i}, v1, s[{SX}:{SX+3}], s51 offen offset:{4*sel}")
            A("s_add_u32 s51, s51, 2048")
        A("s_waitcnt vmcnt(0)")
        op = "min" if selmin else "max"
        for i in range(1, per):
            A(f"v_min_u32 v4, v4, v{4+2*i}"); A(f"v_{op}_u32 v5, v5, v{5+2*i}")
        A("s_nop 1")
        A("v_readlane_b32 s4, v4, 0"); A("v_readlane_b32 s5, v5, 0")
        for l in range(1, 64):
            A(f"v_readlane_b32 s6, v4, {l}"); A(f"v_readlane_b32 s7, v5, {l}"); A("s_min_u32 s4, s4, s6"); A(f"s_{op}_u32 s5, s5, s7")
        A("s_sub_u32 s5, s5, s4"); A("s_min_u32 s5, s5, 20000"); A(f"s_mul_i32 s5, s5, {mult}")
        A("s_memrealtime s[8:9]"); A("s_waitcnt lgkmcnt(0)")
        A("L_spin:"); A("s_memrealtime s[10:11]"); A("s_waitcnt lgkmcnt(0)"); A("s_sub_u32 s6, s10, s8"); A("s_cmp_lt_u32 s6, s5"); A("s_cbranch_scc1 L_spin")
        A("L_done3:"); A("s_endpgm")
    if not fused:
        A(".globl combine_kernel"); A(".p2align 8"); A(".type combine_kernel,@function"); A("combine_kernel:")
        A("s_cmp_ge_u32 s2, 64"); A("s_cbranch_scc1 L_done2")
        A("s_load_dwordx2 s[20:21], s[0:1], 48"); A("s_load_dwordx2 s[24:25], s[0:1], 64")
        A("v_lshlrev_b32 v28, 5, v0"); A("v_lshlrev_b32 v29, 3, v0")
        A("s_mov_b32 s4, s2"); A("s_lshl_b32 s7, s4, 10"); A(f"s_mov_b32 s49, {CEXP:#x}")
        A("s_waitcnt lgkmcnt(0)")
        srd(SX, 24, nwg * 4096)
        final("")
        A("L_done2:"); A("s_endpgm")
    def kd(name, nfv, acc):
        A(f".amdhsa_kernel {name}")
        A(f"  .amdhsa_next_free_vgpr {nfv}"); A("  .amdhsa_next_free_sgpr 80"); A(f"  .amdhsa_accum_offset {acc}")
        A("  .amdhsa_group_segment_fixed_size 0"); A("  .amdhsa_kernarg_size 72"); A("  .amdhsa_user_sgpr_count 2")
        A("  .amdhsa_user_sgpr_kernarg_segment_ptr 1"); A("  .amdhsa_system_sgpr_workgroup_id_x 1")
        A("  .amdhsa_float_denorm_mode_32 3")
        A(".end_amdhsa_kernel")
    A('.section .rodata,"a"'); A(".p2align 6")
    need = max(nv, R + 12 * max(nwaves, nsplit))
    accum = (need + 3) // 4 * 4
    kd(KN, accum + ring * 4, accum)
    if not fused:
        A(".p2align 6")
        x = (R + 12 * nsplit + 3) // 4 * 4
        kd("combine_kernel", x, x)
        if sel >= 0:
            A(".p2align 6"); kd("diag_kernel", 128, 128)
    return "\n".join(L) + "\n"
if __name__ == "__main__":
    name = sys.argv[1]
    kw = {}
    for x in sys.argv[2:]:
        k, v = x.split("=")
        try: v = int(v)
        except: pass
        if k.endswith("flags"): v = v.replace("+", " ").replace("none", "")
        kw[k] = v
    open(name, "w").write(gen(**kw))
```

```python
import sys, struct, math
KN = "standalone__tree_speculative_verify_tree_attention_over_candidate_token_tree__decode_kernel"
HEADER = open("standalone__tree_speculative_verify_tree_attention_over_candidate_token_tree__decode.s.ref").read().split("; Override launch geometry")[0]
def f2u(x): return struct.unpack("<I", struct.pack("<f", x))[0]
CEXP = f2u(0.0625 * 1.4426950408889634)

def gen(nsplit=4, nwaves=4, depth=5, slots=8, flags="nt", lds=90000, stamp=0, early=1, d0=0, dend=0, nend=0):
    nwg = 64 * nsplit
    kpw = 4096 // (nsplit * nwaves)
    nstep = kpw // 4
    nld = nstep * 2
    L = []; A = L.append
    ML = nwaves * 2048
    ldsb = max(lds, ML + nwaves * 16)
    A(HEADER.rstrip())
    A(f"; @launch grid=({nwg},1,1) block=({64*nwaves},1,1) lds={ldsb}")
    A('.amdgcn_target "amdgcn-amd-amdhsa--gfx950"')
    A(".text"); A(f".globl {KN}"); A(".p2align 8"); A(f".type {KN},@function"); A(f"{KN}:")
    VLANE, VN, VG, VOK, VOV = 1, 2, 3, 4, 5
    VMASK = 6
    VL, VM = 10, 11
    ACC = 12
    VA = 20
    VQ = 32
    VVT = 40
    VKT = 48
    VST = 56
    VD = 60
    VR = 76
    VS = VR + 4 * slots
    nv = VS + nstep
    assert nv <= 256
    SK, SV, SQ, SX = 28, 32, 36, 40
    def st(i):
        if stamp: A(f"s_memrealtime s[{60+2*i}:{61+2*i}]")
    A(f"s_cmp_ge_u32 s2, {nwg}"); A("s_cbranch_scc1 L_done")
    st(0)
    A("s_load_dwordx16 s[8:23], s[0:1], 0")
    A("s_load_dwordx2 s[24:25], s[0:1], 64")
    A("v_lshrrev_b32 v28, 6, v0"); A(f"v_and_b32 v{VLANE}, 63, v0")
    A(f"v_and_b32 v{VN}, 15, v0")
    A("v_readfirstlane_b32 s3, v28")
    A(f"v_lshrrev_b32 v{VG}, 4, v{VLANE}")
    A(f"v_and_b32 v29, 3, v0")
    A(f"v_lshl_add_u32 v29, v{VG}, 2, v29"); A("v_lshlrev_b32 v29, 4, v29")
    A(f"v_lshrrev_b32 v30, 2, v{VN}")
    A(f"v_lshl_add_u32 v{VOK}, v30, 9, v29")
    A(f"v_lshlrev_b32 v30, 4, v{VN}")
    A(f"v_lshl_add_u32 v{VOV}, v{VG}, 9, v30")
    A(f"v_lshrrev_b32 v28, 3, v{VN}"); A("v_lshl_add_u32 v28, v28, 9, v29")
    ls = int(math.log2(nsplit))
    A(f"s_lshr_b32 s4, s2, {ls}")
    A(f"s_and_b32 s6, s2, {nsplit-1}"); A("s_add_u32 s6, s6, s3")
    A(f"s_mul_i32 s5, s2, {nwaves*kpw*512}"); A("s_lshl_b32 s7, s3, 11"); A("s_add_u32 s5, s5, s7")
    A("s_lshl_b32 s7, s4, 10")
    A("s_lshl_b32 s26, s4, 9")
    A("s_waitcnt lgkmcnt(0)")
    st(1)
    def srd(d, b, n):
        A(f"s_mov_b32 s{d}, s{b}"); A(f"s_mov_b32 s{d+1}, s{b+1}"); A(f"s_mov_b32 s{d+2}, {n}"); A(f"s_mov_b32 s{d+3}, 0x20000")
    srd(SK, 10, "0x8000000"); srd(SQ, 8, 65536)
    for j in range(2):
        A(f"buffer_load_dwordx4 v[{VQ+4*j}:{VQ+4*j+3}], v28, s[{SQ}:{SQ+3}], s7 offen offset:{256*j}")
    n = 2 * nld
    stride = nwaves * 2048
    cur = {"issued": 0}
    def load1():
        i = cur["issued"]
        if i >= n: return
        cur["issued"] = i + 1
        tn = "k" if i < nld else "v"
        s, hf = divmod(i % nld, 2)
        if hf == 0:
            if s == 0: A("s_mov_b32 s48, s5")
            else: A(f"s_add_u32 s48, s48, {stride}")
        r = VR + (i % slots) * 4
        if tn == "k": A(f"buffer_load_dwordx4 v[{r}:{r+3}], v{VOK}, s[{SK}:{SK+3}], s48 offen offset:{256*hf} {flags}")
        else: A(f"buffer_load_dwordx4 v[{r}:{r+3}], v{VOV}, s[{SV}:{SV+3}], s48 offen offset:{256*hf} {flags}")
    def dep(i):
        if dend and i >= n - nend: return dend
        return depth
    for i in range(max(depth, d0)): load1()
    srd(SV, 12, "0x8000000")
    A("s_cmp_lg_u32 s6, 0"); A("s_cbranch_scc1 L_notree0")
    srd(SX, 14, 32768)
    for j in range(2):
        A(f"buffer_load_dwordx4 v[{VKT+4*j}:{VKT+4*j+3}], v29, s[{SX}:{SX+3}], s26 offen offset:{256*j}")
    srd(SX + 4, 16, 32768)
    for hf in range(2):
        A(f"buffer_load_dwordx4 v[{VVT+4*hf}:{VVT+4*hf+3}], v30, s[{SX+4}:{SX+7}], s26 offen offset:{256*hf}")
    A("s_lshr_b32 s27, s4, 4"); A("s_lshl_b32 s27, s27, 2")
    A("s_load_dword s27, s[18:19], s27")
    A("L_notree0:")
    A(f"v_and_b32 v30, 1, v0"); A("v_lshlrev_b32 v30, 4, v30"); A("v_mov_b32 v31, 0xffff"); A("v_lshlrev_b32 v30, v30, v31")
    A(f"v_bfe_u32 v29, v0, 1, 2")
    for j in range(4):
        A(f"v_cmp_eq_u32 vcc, {j}, v29"); A("s_nop 1"); A(f"v_cndmask_b32 v{VMASK+j}, 0, v30, vcc")
    for r in range(8): A(f"v_mov_b32 v{ACC+r}, 0")
    A(f"v_mov_b32 v{VL}, 0"); A(f"v_mov_b32 v{VM}, 0xff800000")
    A(f"s_mov_b32 s49, {CEXP:#x}")
    def wait_issue(i):
        out = cur["issued"] - i - 1
        A(f"s_waitcnt vmcnt({out})")
        if early:
            while cur["issued"] < min(n, i + 1 + dep(i)) and cur["issued"] - slots < i: load1()
    def late_issue(i):
        while cur["issued"] < min(n, i + 1 + dep(i)) and cur["issued"] - slots <= i: load1()
    def diagop(d, dst, c):
        if c == 0: A(f"v_mov_b32_dpp v{dst}, v{d} quad_perm:[0,0,0,0] row_mask:0xf bank_mask:0xf")
        else: A(f"v_add_f32_dpp v{dst}, v{d+c}, v{dst} quad_perm:[{c},{c},{c},{c}] row_mask:0xf bank_mask:0xf")
    def diag(d, dst):
        for c in range(4):
            diagop(d, dst, c)
            if c < 3: A("s_nop 1")
    def chain_ops(h):
        cnt = 0
        for t in range(nstep):
            k = h - (2 * t + 3)
            if 0 <= k < 4: diagop(VD + 4 * (t % 4), VS + t, k); cnt += 1
            if k == 4 and t % 2 == 1: A(f"v_max3_f32 v{VM}, v{VS+t-1}, v{VS+t}, v{VM}"); cnt += 1
        return cnt
    for s in range(nstep):
        d = VD + 4 * (s % 4)
        for hf in range(2):
            i = 2 * s + hf
            wait_issue(i)
            if i == 0: st(2)
            r = VR + (i % slots) * 4
            c = "0" if hf == 0 else f"v[{d}:{d+3}]"
            A(f"v_mfma_f32_16x16x32_bf16 v[{d}:{d+3}], v[{r}:{r+3}], v[{VQ+4*hf}:{VQ+4*hf+3}], {c}")
            late_issue(i)
            if 3 <= i <= 5 + max(0, d0 - depth): A("s_nop 3")
            chain_ops(i)
    st(3)
    for h in range(2 * nstep, 2 * nstep + 6):
        A("s_nop 2" if h < 2 * nstep + 2 else "s_nop 1")
        chain_ops(h)
    A("s_cmp_lg_u32 s6, 0"); A("s_cbranch_scc1 L_notree1")
    for j in range(2):
        c = "0" if j == 0 else f"v[{VD}:{VD+3}]"
        A(f"v_mfma_f32_16x16x32_bf16 v[{VD}:{VD+3}], v[{VKT+4*j}:{VKT+4*j+3}], v[{VQ+4*j}:{VQ+4*j+3}], {c}")
    A("s_waitcnt lgkmcnt(0)")
    A("s_bitcmp1_b32 s4, 3")
    A("s_cselect_b32 s50, 0, 16"); A("s_lshl_b32 s27, s27, s50"); A("s_and_b32 s27, s27, 0xffff0000")
    A("v_mov_b32 v29, s27"); A("v_sub_f32 v29, 1.0, v29")
    A(f"v_mul_f32 v29, {f2u(-1.6e10):#x}, v29")
    A(f"v_cmp_gt_u32 vcc, 16, v{VLANE}")
    A("v_mov_b32 v30, 0xff800000")
    diag(VD, VST)
    A(f"v_add_f32 v{VST}, v{VST}, v29")
    A(f"v_cndmask_b32 v{VST}, v30, v{VST}, vcc")
    A(f"v_max_f32 v{VM}, v{VM}, v{VST}")
    A("L_notree1:")
    def xrow(reg, op):
        A(f"v_mov_b32 v28, v{reg}"); A("s_nop 1"); A(f"v_permlane32_swap_b32 v{reg}, v28"); A("s_nop 1"); A(f"{op} v{reg}, v{reg}, v28")
        A(f"v_mov_b32 v28, v{reg}"); A("s_nop 1"); A(f"v_permlane16_swap_b32 v{reg}, v28"); A("s_nop 1"); A(f"{op} v{reg}, v{reg}, v28")
    xrow(VM, "v_max_f32")
    def mkA(sreg, buf):
        a = VA + 4 * buf
        A(f"v_sub_f32 v28, v{sreg}, v{VM}"); A("v_mul_f32 v28, s49, v28"); A("v_exp_f32 v28, v28"); A("s_nop 0")
        A(f"v_cvt_pk_bf16_f32 v29, v28, v28"); A(f"v_add_f32 v{VL}, v{VL}, v28")
        for j in range(4): A(f"v_and_b32 v{a+j}, v29, v{VMASK+j}")
    A("s_cmp_lg_u32 s6, 0"); A("s_cbranch_scc1 L_notree2")
    mkA(VST, 1); A("s_nop 1")
    for hf in range(2):
        A(f"v_mfma_f32_16x16x32_bf16 v[{ACC+4*hf}:{ACC+4*hf+3}], v[{VA+4}:{VA+7}], v[{VVT+4*hf}:{VVT+4*hf+3}], v[{ACC+4*hf}:{ACC+4*hf+3}]")
    A("L_notree2:")
    mkA(VS, 0)
    A("s_nop 1")
    for k in range(nstep):
        a = VA + 4 * (k % 2)
        for hf in range(2):
            i = nld + 2 * k + hf
            wait_issue(i)
            r = VR + (i % slots) * 4
            A(f"v_mfma_f32_16x16x32_bf16 v[{ACC+4*hf}:{ACC+4*hf+3}], v[{a}:{a+3}], v[{r}:{r+3}], v[{ACC+4*hf}:{ACC+4*hf+3}]")
            late_issue(i)
            if hf == 0 and k + 1 < nstep: mkA(VS + k + 1, (k + 1) % 2)
            if hf == 0 and k + 1 == nstep:
                xrow(VL, "v_add_f32")
                A(f"v_lshlrev_b32 v28, 5, v{VN}")
                A(f"v_and_b32 v29, 1, v{VG}"); A("v_lshl_add_u32 v28, v29, 4, v28")
                A(f"v_lshrrev_b32 v29, 1, v{VG}"); A("v_lshl_add_u32 v28, v29, 10, v28")
                A("s_lshl_b32 s50, s3, 11"); A("v_add_u32 v28, s50, v28")
                A(f"v_lshrrev_b32 v29, 3, v{VN}"); A("v_lshlrev_b32 v29, 3, v29"); A("s_lshl_b32 s50, s3, 4"); A(f"s_add_u32 s50, s50, {ML}"); A("v_add_u32 v29, s50, v29")
                A(f"ds_write2_b32 v29, v{VM}, v{VL} offset0:0 offset1:1")
                A(f"ds_write_b128 v28, v[{ACC}:{ACC+3}]")
    st(4)
    A("s_nop 7")
    A(f"ds_write_b128 v28, v[{ACC+4}:{ACC+7}] offset:512")
    A("s_waitcnt lgkmcnt(0)"); A("s_barrier")
    st(5); st(6); st(7)
    A("s_cmp_lg_u32 s3, 0"); A("s_cbranch_scc1 L_fin")
    R = 32
    A(f"v_lshlrev_b32 v28, 5, v{VLANE}")
    A(f"v_lshrrev_b32 v29, 5, v{VLANE}"); A("v_lshlrev_b32 v29, 3, v29")
    for w in range(nwaves):
        b = R + 12 * w
        A(f"ds_read_b64 v[{b+8}:{b+9}], v29 offset:{ML+16*w}")
    for w in range(nwaves):
        b = R + 12 * w
        A(f"ds_read_b128 v[{b}:{b+3}], v28 offset:{2048*w}")
        A(f"ds_read_b128 v[{b+4}:{b+7}], v28 offset:{2048*w+16}")
    srd(SX, 24, nwg * 4096)
    A("s_lshl_b32 s50, s2, 12")
    A(f"v_lshlrev_b32 v29, 3, v{VLANE}")
    A("s_waitcnt lgkmcnt(0)")
    def merge(nsrc, R, O):
        A(f"v_mov_b32 v{O+8}, v{R+8}")
        for w in range(1, nsrc): A(f"v_max_f32 v{O+8}, v{O+8}, v{R+12*w+8}")
        for w in range(nsrc):
            b = R + 12 * w
            A(f"v_sub_f32 v{b+10}, v{b+8}, v{O+8}"); A(f"v_mul_f32 v{b+10}, s49, v{b+10}"); A(f"v_exp_f32 v{b+10}, v{b+10}")
        A("s_nop 0")
        for w in range(nsrc):
            b = R + 12 * w
            for e in list(range(8)) + [9]:
                if w == 0: A(f"v_mul_f32 v{O+e}, v{b+10}, v{b+e}")
                else: A(f"v_fmac_f32 v{O+e}, v{b+10}, v{b+e}")
    O = 12
    merge(nwaves, R, O)
    sc = "sc1"
    A(f"buffer_store_dwordx4 v[{O}:{O+3}], v28, s[{SX}:{SX+3}], s50 offen {sc}")
    A(f"buffer_store_dwordx4 v[{O+4}:{O+7}], v28, s[{SX}:{SX+3}], s50 offen offset:16 {sc}")
    A(f"buffer_store_dwordx2 v[{O+8}:{O+9}], v29, s[{SX}:{SX+3}], s50 offen offset:2048 {sc}")
    A("s_lshl_b32 s50, s4, 2"); A("v_mov_b32 v30, s50"); A("v_mov_b32 v31, 1")
    A("s_mov_b64 exec, 1")
    A("s_waitcnt vmcnt(0)"); st(6)
    A("global_atomic_add v31, v30, v31, s[22:23] sc0")
    A("s_waitcnt vmcnt(0)")
    A("v_readfirstlane_b32 s50, v31")
    A("s_mov_b64 exec, -1")
    st(7)
    A(f"s_cmp_lg_u32 s50, {nsplit-1}"); A("s_cbranch_scc1 L_fin")
    A(f"s_lshl_b32 s50, s4, {12+ls}")
    for s in range(nsplit):
        b = R + 12 * s
        A(f"buffer_load_dwordx2 v[{b+8}:{b+9}], v29, s[{SX}:{SX+3}], s50 offen offset:2048 {sc}")
        A(f"buffer_load_dwordx4 v[{b}:{b+3}], v28, s[{SX}:{SX+3}], s50 offen {sc}")
        A(f"buffer_load_dwordx4 v[{b+4}:{b+7}], v28, s[{SX}:{SX+3}], s50 offen offset:16 {sc}")
        if s + 1 < nsplit: A("s_add_u32 s50, s50, 4096")
    srd(SQ, 20, 65536)
    A("v_lshrrev_b32 v30, 1, v28")
    A("s_waitcnt vmcnt(0)")
    merge(nsplit, R, O)
    A(f"v_rcp_f32 v{O+9}, v{O+9}"); A("s_nop 0")
    for e in range(8): A(f"v_mul_f32 v{O+e}, v{O+e}, v{O+9}")
    for e in range(4): A(f"v_cvt_pk_bf16_f32 v{24+e}, v{O+2*e}, v{O+2*e+1}")
    A(f"buffer_store_dwordx4 v[24:27], v30, s[{SQ}:{SQ+3}], s7 offen")
    if stamp: A("s_waitcnt vmcnt(0)"); st(7)
    A("L_fin:")
    if stamp:
        A("s_waitcnt lgkmcnt(0)")
        srd(SX, 24, "0x20000000")
        A(f"s_mul_i32 s51, s2, {nwaves}"); A("s_add_u32 s51, s51, s3"); A("s_lshl_b32 s51, s51, 5"); A("s_add_u32 s51, s51, 0x1000000")
        for i in range(8): A(f"v_mov_b32 v{32+i}, s{60+2*i}")
        A("v_mov_b32 v31, 0"); A("s_mov_b64 exec, 1")
        A(f"buffer_store_dwordx4 v[32:35], v31, s[{SX}:{SX+3}], s51 offen")
        A(f"buffer_store_dwordx4 v[36:39], v31, s[{SX}:{SX+3}], s51 offen offset:16")
    A("L_done:"); A("s_endpgm")
    A('.section .rodata,"a"'); A(".p2align 6")
    need = max(nv, R + 12 * max(nwaves, nsplit))
    accum = (need + 3) // 4 * 4
    A(f".amdhsa_kernel {KN}")
    A(f"  .amdhsa_next_free_vgpr {accum}"); A("  .amdhsa_next_free_sgpr 80"); A(f"  .amdhsa_accum_offset {accum}")
    A("  .amdhsa_group_segment_fixed_size 0"); A("  .amdhsa_kernarg_size 72"); A("  .amdhsa_user_sgpr_count 2")
    A("  .amdhsa_user_sgpr_kernarg_segment_ptr 1"); A("  .amdhsa_system_sgpr_workgroup_id_x 1")
    A("  .amdhsa_float_denorm_mode_32 3")
    A(".end_amdhsa_kernel")
    return "\n".join(L) + "\n"
if __name__ == "__main__":
    name = sys.argv[1]
    kw = {}
    for x in sys.argv[2:]:
        k, v = x.split("=")
        try: v = int(v)
        except: pass
        if k.endswith("flags"): v = v.replace("+", " ").replace("none", "")
        kw[k] = v
    open(name, "w").write(gen(**kw))
```

```python
import sys, struct, math
KN = "standalone__tree_speculative_verify_tree_attention_over_candidate_token_tree__decode_kernel"
HEADER = open("standalone__tree_speculative_verify_tree_attention_over_candidate_token_tree__decode.s.ref").read().split("; Override launch geometry")[0]
def f2u(x): return struct.unpack("<I", struct.pack("<f", x))[0]
CEXP = f2u(0.0625 * 1.4426950408889634)

def gen(depth=5, dmax=7, slots=12, flags="nt", lds=90000, stamp=0, xb=6, outsc="", noclear=0,
        ka=40, kd=44, r0=64, a0=4, r1=112, a1=16, sh=4, boost=1, last=0, prof=None, rsh=0, rmask=0, rmul=1, d0=0, n0=0, dend=0, nend=0, dlow=0, base=0):
    nsplit, nwaves = 4, 4
    nwg = 256
    nstep = 64
    nld = nstep * 2
    L = []; A = L.append
    ldsb = max(lds, 128 + 8192)
    LACC = 128
    A(HEADER.rstrip())
    A(f"; @launch grid=({nwg},1,1) block=(320,1,1) lds={ldsb}")
    A('.amdgcn_target "amdgcn-amd-amdhsa--gfx950"')
    A(".text"); A(f".globl {KN}"); A(".p2align 8"); A(f".type {KN},@function"); A(f"{KN}:")
    VOK, VOV, VOQ = 1, 2, 3
    VMASK = 4
    VL, VM = 8, 9
    VLA, VLM = 10, 11
    ACC = 12
    VA = 20
    VQ = 32
    VD = 40
    VR = 56
    VS = VR + 4 * slots
    nv = VS + nstep
    assert nv <= 256
    SK, SV, SQ, SX = 12, 16, 20, 28
    pp = [int(x) for x in prof.split(",")] if prof else None
    mode = {"stream": True}
    def st(i, force=False):
        if pp and mode["stream"] and i >= 1 and not force: return
        if stamp: A(f"s_memrealtime s[{60+2*i}:{61+2*i}]")
    st(0)
    A(f"s_load_dwordx2 s[{SK}:{SK+1}], s[0:1], 8")
    A(f"s_load_dwordx2 s[{SX}:{SX+1}], s[0:1], 64")
    A(f"s_load_dwordx2 s[{SQ}:{SQ+1}], s[0:1], 0")
    A(f"s_load_dwordx2 s[{SV}:{SV+1}], s[0:1], 16")
    A(f"s_cmp_ge_u32 s2, {nwg}"); A("s_cbranch_scc1 L_done")
    A("v_lshrrev_b32 v31, 6, v0")
    A("v_cmp_gt_u32 vcc, 4, v31")
    A("v_and_b32 v28, 3, v0")
    A("v_bfe_u32 v29, v0, 4, 2")
    A("s_cbranch_vccnz L_stream")
    A("v_and_b32 v1, 63, v0")
    A("v_lshlrev_b32 v4, 4, v1")
    for r in range(4): A(f"v_mov_b32 v{12+r}, -1")
    A(f"s_mov_b32 s{SX+2}, {nwg*4096}"); A(f"s_mov_b32 s{SX+3}, 0x20000")
    A("s_lshl_b32 s50, s2, 12")
    A("s_waitcnt lgkmcnt(0)")
    if not noclear:
        A(f"buffer_store_dwordx4 v[12:15], v4, s[{SX}:{SX+3}], s50 offen sc1")
        A(f"buffer_store_dwordx4 v[12:15], v4, s[{SX}:{SX+3}], s50 offen offset:1024 sc1")
        A("s_mov_b64 exec, 1")
        A(f"buffer_store_dwordx4 v[12:15], v4, s[{SX}:{SX+3}], s50 offen offset:2048 sc1")
        A("s_mov_b64 exec, -1")
    A("s_branch L_helper")
    A("L_stream:")
    A("v_lshl_add_u32 v28, v29, 2, v28")
    A("v_lshlrev_b32 v28, 4, v28")
    A("v_bfe_u32 v30, v0, 2, 2")
    A("v_lshl_add_u32 v30, v31, 2, v30")
    A(f"v_lshl_add_u32 v{VOK}, v30, 9, v28")
    if rmask:
        A("s_lshl_b32 s47, s2, 19"); A(f"v_add_u32 v{VOK}, s47, v{VOK}")
        A(f"s_lshr_b32 s48, s2, {rsh}"); A(f"s_and_b32 s48, s48, {rmask}"); A(f"s_mul_i32 s48, s48, {rmul*8192}"); A("s_and_b32 s48, s48, 0x7ffff")
    else:
        A("s_lshl_b32 s48, s2, 19")
    A(f"s_mov_b32 s{SK+2}, 0x8000000"); A(f"s_mov_b32 s{SK+3}, 0x20000")
    A("s_waitcnt lgkmcnt(0)")
    st(1)
    n = 2 * nld
    stride = nwaves * 2048
    cur = {"issued": 0}
    order = []
    def load1():
        i = cur["issued"]
        assert i < n
        cur["issued"] = i + 1
        tn = "k" if i < nld else "v"
        s, hf = divmod(i % nld, 2)
        if hf == 0:
            if rmask:
                if i > 0: A(f"s_add_u32 s48, s48, {stride}"); A("s_and_b32 s48, s48, 0x7ffff")
            elif s == 0:
                if tn == "v": A("s_lshl_b32 s48, s2, 19")
            else: A(f"s_add_u32 s48, s48, {stride}")
        r = VR + (i % slots) * 4
        if tn == "k": A(f"buffer_load_dwordx4 v[{r}:{r+3}], v{VOK}, s[{SK}:{SK+3}], s48 offen offset:{256*hf} {flags}")
        else: A(f"buffer_load_dwordx4 v[{r}:{r+3}], v{VOV}, s[{SV}:{SV+3}], s48 offen offset:{256*hf} {flags}")
        order.append(("d", i))
    def qloads():
        A("v_bfe_u32 v30, v0, 3, 1")
        A(f"v_lshl_add_u32 v{VOQ}, v30, 9, v28")
        A("s_lshr_b32 s7, s2, 2"); A("s_lshl_b32 s7, s7, 10")
        A(f"s_mov_b32 s{SQ+2}, 0x10000"); A(f"s_mov_b32 s{SQ+3}, 0x20000")
        for j in range(2):
            A(f"buffer_load_dwordx4 v[{VQ+4*j}:{VQ+4*j+3}], v{VOQ}, s[{SQ}:{SQ+3}], s7 offen offset:{256*j}")
            order.append(("q", j))
    done = {"pos": -1}
    def wait_for(op):
        p = order.index(op)
        if p <= done["pos"]: return
        done["pos"] = p
        A(f"s_waitcnt vmcnt({len(order) - 1 - p})")
    def sdep(j):
        if d0 and j < n0: return d0
        if dend and j >= n - nend: return dend
        return depth
    first = sdep(0)
    for i in range(first): load1()
    qloads()
    A(f"s_mov_b32 s{SV+2}, 0x8000000"); A(f"s_mov_b32 s{SV+3}, 0x20000")
    A("v_and_b32 v30, 15, v0")
    A("v_lshl_add_u32 v28, v31, 2, v29")
    A("v_lshlrev_b32 v28, 9, v28")
    A(f"v_lshl_add_u32 v{VOV}, v30, 4, v28")
    if rmask: A(f"v_add_u32 v{VOV}, s47, v{VOV}")
    A(f"v_lshlrev_b32 v{VLA}, 5, v30")
    A("v_and_b32 v28, 1, v29"); A(f"v_lshl_add_u32 v{VLA}, v28, 4, v{VLA}")
    A("v_lshrrev_b32 v28, 5, v0"); A(f"v_lshl_add_u32 v{VLA}, v28, 10, v{VLA}")
    A("v_bfe_u32 v28, v0, 3, 1"); A("v_lshl_add_u32 v28, v31, 1, v28"); A(f"v_lshlrev_b32 v{VLM}, 3, v28")
    A(f"v_and_b32 v30, 1, v0"); A("v_lshlrev_b32 v30, 4, v30"); A("v_mov_b32 v31, 0xffff"); A("v_lshlrev_b32 v30, v30, v31")
    A(f"v_bfe_u32 v29, v0, 1, 2")
    for j in range(4):
        A(f"v_cmp_eq_u32 vcc, {j}, v29"); A(f"v_mov_b32 v{ACC+2*j}, 0"); A(f"v_mov_b32 v{ACC+2*j+1}, 0"); A(f"v_cndmask_b32 v{VMASK+j}, 0, v30, vcc")
    A(f"v_mov_b32 v{VL}, 0"); A(f"v_mov_b32 v{VM}, 0xff800000"); A("v_mov_b32 v31, 0")
    A(f"s_mov_b32 s49, {CEXP:#x}")
    cons = {"c": 0}
    ib = nld + 2 * kd if boost else n
    lab = {"n": 0}
    def advance(i):
        lag = depth
        while True:
            j = cur["issued"]
            ahead = dmax if j >= ib else sdep(j)
            if j >= n or j > i + ahead: break
            assert j - slots < cons["c"], (j, cons)
            if j >= ib:
                lab["n"] += 1
                A(f"s_cmp_gt_u32 s51, {(n - 1 - j) if last else (j - ib)}"); A(f"s_cbranch_scc1 L_b{lab['n']}")
                A(f"s_waitcnt vmcnt({(dlow or depth)-1})")
                A(f"L_b{lab['n']}:")
                wait_for(("d", j - dmax))
            else:
                wait_for(("d", j - sdep(j)))
            load1()
        wait_for(("d", i))
        if pp and i in pp: st(1 + pp.index(i), True)
    for i in range(first):
        wait_for(("d", i))
        if i == 0: st(2)
        j = cur["issued"]
        if j <= i + sdep(j) and j < slots: load1()
    wait_for(("q", 1))
    def diagop(d, dst, c):
        if c == 0: A(f"v_mov_b32_dpp v{dst}, v{d} quad_perm:[0,0,0,0] row_mask:0xf bank_mask:0xf")
        else: A(f"v_add_f32_dpp v{dst}, v{d+c}, v{dst} quad_perm:[{c},{c},{c},{c}] row_mask:0xf bank_mask:0xf")
    def chain_ops(h):
        for t in range(nstep):
            k = h - (2 * t + 3)
            if 0 <= k < 4: diagop(VD + 4 * (t % 4), VS + t, k)
            if k == 4 and t % 2 == 1: A(f"v_max3_f32 v{VM}, v{VS+t-1}, v{VS+t}, v{VM}")
    for s in range(nstep):
        d = VD + 4 * (s % 4)
        for hf in range(2):
            i = 2 * s + hf
            mark = len(L)
            advance(i)
            r = VR + (i % slots) * 4
            c = "0" if hf == 0 else f"v[{d}:{d+3}]"
            A(f"v_mfma_f32_16x16x32_bf16 v[{d}:{d+3}], v[{r}:{r+3}], v[{VQ+4*hf}:{VQ+4*hf+3}], {c}")
            cons["c"] = i + 1
            if len(L) - mark < 3 or i <= 5: A("s_nop 3")
            chain_ops(i)
    st(3)
    for h in range(2 * nstep, 2 * nstep + 6):
        A("s_nop 2" if h < 2 * nstep + 2 else "s_nop 1")
        chain_ops(h)
    def xrow(reg, op):
        A(f"v_mov_b32 v28, v{reg}"); A("s_nop 1"); A(f"v_permlane32_swap_b32 v{reg}, v28"); A("s_nop 1"); A(f"{op} v{reg}, v{reg}, v28")
        A(f"v_mov_b32 v28, v{reg}"); A("s_nop 1"); A(f"v_permlane16_swap_b32 v{reg}, v28"); A("s_nop 1"); A(f"{op} v{reg}, v{reg}, v28")
    xrow(VM, "v_max_f32")
    def mkP2(t):
        a, b = VS + t, VS + t + 1
        A(f"v_sub_f32 v28, v{a}, v{VM}"); A(f"v_sub_f32 v29, v{b}, v{VM}")
        A("v_mul_f32 v28, s49, v28"); A("v_mul_f32 v29, s49, v29")
        A("v_exp_f32 v28, v28"); A("v_exp_f32 v29, v29")
        A(f"v_cvt_pk_bf16_f32 v{a}, v28, v28"); A(f"v_add_f32 v{VL}, v{VL}, v28")
        A(f"v_cvt_pk_bf16_f32 v{b}, v29, v29"); A(f"v_add_f32 v{VL}, v{VL}, v29")
    def mkA(t):
        a = VA + 4 * (t % 2)
        for j in range(4): A(f"v_and_b32 v{a+j}, v{VS+t}, v{VMASK+j}")
    mkP2(0); mkA(0); A("s_nop 1")
    kread = kd - (depth + 1) // 2 - 1
    for k in range(nstep):
        a = VA + 4 * (k % 2)
        for hf in range(2):
            i = nld + 2 * k + hf
            advance(i)
            r = VR + (i % slots) * 4
            A(f"v_mfma_f32_16x16x32_bf16 v[{ACC+4*hf}:{ACC+4*hf+3}], v[{a}:{a+3}], v[{r}:{r+3}], v[{ACC+4*hf}:{ACC+4*hf+3}]")
            cons["c"] = i + 1
            if hf == 0 and k + 1 < nstep: mkA(k + 1)
            if hf == 1 and 2 * k + 2 < nstep: mkP2(2 * k + 2)
            if hf == 1 and 2 * k + 2 == nstep:
                xrow(VL, "v_add_f32")
                A(f"ds_write2_b32 v{VLM}, v{VM}, v{VL} offset0:0 offset1:1")
            if boost and hf == 1 and k == ka - (depth + 1) // 2 - 1: A("s_barrier")
            if boost and hf == 0 and k == kread: A("ds_read_b32 v30, v31 offset:64")
            if boost and hf == 1 and k == kread:
                A("s_waitcnt lgkmcnt(0)"); A("v_readfirstlane_b32 s51, v30")
                if stamp: A("s_mov_b32 s72, s51")
            if hf == 1 and k == nstep - 1 - xb:
                A("s_waitcnt lgkmcnt(0)"); A("s_barrier")
            if hf == 0 and k + 1 == nstep:
                A("s_nop 7"); A(f"ds_write_b128 v{VLA}, v[{ACC}:{ACC+3}] offset:{LACC}")
    st(4)
    A("s_nop 7")
    A(f"ds_write_b128 v{VLA}, v[{ACC+4}:{ACC+7}] offset:{512+LACC}")
    A("s_waitcnt lgkmcnt(0)"); A("s_barrier")
    if stamp:
        st(5); st(7)
        if boost: A("s_mul_i32 s72, s72, 100"); A("s_add_u32 s72, s72, s60")
        else: st(6)
        A("v_lshrrev_b32 v31, 6, v0"); A("s_nop 0"); A("v_readfirstlane_b32 s3, v31")
        A("s_branch L_fin")
    else:
        A("s_endpgm")
    mode["stream"] = False
    A("L_helper:")
    SY, SO = 32, 36
    A("s_load_dwordx4 s[40:43], s[0:1], 24")
    A("s_load_dwordx4 s[44:47], s[0:1], 40")
    A("s_load_dwordx2 s[52:53], s[0:1], 56")
    st(1)
    A("v_lshlrev_b32 v2, 5, v1")
    A("v_and_b32 v5, 0x1f0, v4")
    A("s_lshr_b32 s4, s2, 2")
    A("s_lshl_b32 s7, s4, 10"); A("s_lshl_b32 s26, s4, 9")
    A(f"s_mov_b32 s49, {CEXP:#x}")
    A("s_lshr_b32 s27, s4, 4"); A("s_lshl_b32 s27, s27, 2")
    A("v_lshrrev_b32 v7, 5, v1"); A("v_lshlrev_b32 v7, 3, v7")
    A("v_mov_b32 v28, 0"); A(f"v_mov_b32 v29, {base}"); A("ds_write_b32 v28, v29 offset:64")
    VT8 = 32
    A("v_mov_b32 v6, 0xff800000")
    for e in range(8): A(f"v_mov_b32 v{VT8+e}, 0")
    A("s_waitcnt lgkmcnt(0)")
    def srd(d, b, nb):
        A(f"s_mov_b32 s{d}, s{b}"); A(f"s_mov_b32 s{d+1}, s{b+1}"); A(f"s_mov_b32 s{d+2}, {nb}"); A(f"s_mov_b32 s{d+3}, 0x20000")
    A("s_and_b32 s5, s2, 3"); A("s_cbranch_scc1 L_notree")
    A("s_load_dword s27, s[44:45], s27")
    A(f"s_mov_b32 s{SQ+2}, 0x10000"); A(f"s_mov_b32 s{SQ+3}, 0x20000")
    A(f"buffer_load_dwordx4 v[16:19], v4, s[{SQ}:{SQ+3}], s7 offen")
    srd(SY, 40, 32768)
    A(f"buffer_load_dwordx4 v[20:23], v5, s[{SY}:{SY+3}], s26 offen")
    srd(SO, 42, 32768)
    A(f"buffer_load_dwordx4 v[24:27], v5, s[{SO}:{SO+3}], s26 offen")
    A("s_waitcnt vmcnt(0) lgkmcnt(0)")
    A("v_mov_b32 v6, 0")
    for j in range(4):
        A(f"v_lshlrev_b32 v28, 16, v{16+j}"); A(f"v_lshlrev_b32 v29, 16, v{20+j}"); A("v_fmac_f32 v6, v28, v29")
        A(f"v_and_b32 v28, 0xffff0000, v{16+j}"); A(f"v_and_b32 v29, 0xffff0000, v{20+j}"); A("v_fmac_f32 v6, v28, v29")
    for s_ in (8, 4, 2, 1):
        A("s_nop 1"); A(f"v_add_f32_dpp v6, v6, v6 row_ror:{s_} row_mask:0xf bank_mask:0xf")
    A("v_mov_b32 v28, v6"); A("s_nop 1"); A("v_permlane16_swap_b32 v6, v28"); A("s_nop 1"); A("v_add_f32 v6, v6, v28")
    A("s_bitcmp1_b32 s4, 3")
    A("s_cselect_b32 s51, 0, 16"); A("s_lshl_b32 s27, s27, s51"); A("s_and_b32 s27, s27, 0xffff0000")
    A("v_mov_b32 v29, s27"); A("v_sub_f32 v29, 1.0, v29")
    A(f"v_mul_f32 v29, {f2u(-1.6e10):#x}, v29")
    A("v_add_f32 v6, v6, v29")
    for j in range(4):
        A(f"v_lshlrev_b32 v{VT8+2*j}, 16, v{24+j}"); A(f"v_and_b32 v{VT8+2*j+1}, 0xffff0000, v{24+j}")
    A("L_notree:")
    srd(SO, 46, 65536)
    A("s_lshl_b32 s51, s4, 2"); A("v_mov_b32 v8, s51"); A("v_mov_b32 v9, 1")
    A("s_mov_b32 s56, -2")
    A("s_waitcnt vmcnt(0)")
    st(2)
    if boost:
        A("s_and_b32 s51, s51, 0x80"); A("v_mov_b32 v28, s51"); A("v_mov_b32 v29, 0x10000")
        A("s_barrier")
        A("s_mov_b64 exec, 1")
        A("global_atomic_add v29, v28, v29, s[52:53] sc0")
        A("s_waitcnt vmcnt(0)")
        A("v_lshrrev_b32 v29, 16, v29")
        A(f"v_subrev_u32 v30, {r0}, v29"); A("v_max_i32 v30, 0, v30"); A(f"v_mul_u32_u24 v30, {a0}, v30")
        A(f"v_subrev_u32 v31, {r1}, v29"); A("v_max_i32 v31, 0, v31"); A(f"v_mul_u32_u24 v31, {a1}, v31")
        A("v_add_u32 v30, v30, v31"); A(f"v_lshrrev_b32 v30, {sh}, v30")
        A("v_mov_b32 v28, 0")
        A("ds_write_b32 v28, v30 offset:64")
        A("s_mov_b64 exec, -1")
    A("s_barrier")
    st(3)
    A("s_mov_b64 exec, 1")
    A("global_atomic_add v9, v8, v9, s[52:53] sc0")
    A("s_mov_b64 exec, -1")
    MW = 40
    for w in range(4): A(f"ds_read_b64 v[{MW+2*w}:{MW+2*w+1}], v7 offset:{16*w}")
    A("s_waitcnt lgkmcnt(0)")
    A(f"v_max3_f32 v10, v{MW}, v{MW+2}, v{MW+4}"); A(f"v_max3_f32 v10, v10, v{MW+6}, v6")
    for w in range(4): A(f"v_sub_f32 v{48+w}, v{MW+2*w}, v10")
    A("v_sub_f32 v52, v6, v10")
    for w in range(5): A(f"v_mul_f32 v{48+w}, s49, v{48+w}")
    for w in range(5): A(f"v_exp_f32 v{48+w}, v{48+w}")
    A("s_nop 0")
    A(f"v_fma_f32 v11, v48, v{MW+1}, v52")
    for w in range(1, 4): A(f"v_fmac_f32 v11, v{48+w}, v{MW+2*w+1}")
    O = 12
    for e in range(8): A(f"v_mul_f32 v{O+e}, v52, v{VT8+e}")
    A("v_min_u32 v10, s56, v10"); A("v_min_u32 v11, s56, v11")
    A("s_waitcnt vmcnt(0)")
    A("v_readfirstlane_b32 s51, v9")
    st(4)
    A("s_and_b32 s51, s51, 7")
    A("s_cmp_eq_u32 s51, 3"); A("s_cbranch_scc1 L_comb")
    RD = 64
    def ldsread():
        for w in range(4):
            A(f"ds_read_b128 v[{RD+8*w}:{RD+8*w+3}], v2 offset:{LACC+2048*w}")
            A(f"ds_read_b128 v[{RD+8*w+4}:{RD+8*w+7}], v2 offset:{LACC+2048*w+16}")
    A("s_mov_b32 exec_lo, 1"); A("s_mov_b32 exec_hi, 1")
    A(f"buffer_store_dwordx2 v[10:11], v7, s[{SX}:{SX+3}], s50 offen offset:2048 sc1")
    A("s_mov_b64 exec, -1")
    A("s_barrier")
    st(5)
    ldsread()
    for w in range(4):
        A(f"s_waitcnt lgkmcnt({6-2*w})")
        for e in range(8): A(f"v_fmac_f32 v{O+e}, v{48+w}, v{RD+8*w+e}")
    for e in range(4): A(f"v_min_u32 v{O+e}, s56, v{O+e}")
    A(f"buffer_store_dwordx4 v[{O}:{O+3}], v4, s[{SX}:{SX+3}], s50 offen sc1")
    for e in range(4, 8): A(f"v_min_u32 v{O+e}, s56, v{O+e}")
    A(f"buffer_store_dwordx4 v[{O+4}:{O+7}], v4, s[{SX}:{SX+3}], s50 offen offset:1024 sc1")
    if stamp:
        st(6); A("s_waitcnt vmcnt(0)"); st(7); A("s_branch L_hfin")
    else: A("s_endpgm")
    A("L_comb:")
    for j in range(1, 4):
        A(f"s_add_u32 s{56+j}, s2, {j}"); A(f"s_and_b32 s{56+j}, s{56+j}, 3"); A(f"s_and_b32 s51, s2, -4"); A(f"s_or_b32 s{56+j}, s{56+j}, s51"); A(f"s_lshl_b32 s{56+j}, s{56+j}, 12")
    PM = 96
    A("s_mov_b32 s5, 0x100000")
    A("L_poll:")
    for j in range(3):
        b = PM + 12 * j
        A(f"buffer_load_dwordx4 v[{b}:{b+3}], v4, s[{SX}:{SX+3}], s{57+j} offen sc1")
        A(f"buffer_load_dwordx4 v[{b+4}:{b+7}], v4, s[{SX}:{SX+3}], s{57+j} offen offset:1024 sc1")
        A(f"buffer_load_dwordx2 v[{b+8}:{b+9}], v7, s[{SX}:{SX+3}], s{57+j} offen offset:2048 sc1")
    A("v_mov_b32 v28, 0")
    for j in range(3):
        b = PM + 12 * j
        A(f"s_waitcnt vmcnt({6-3*j})")
        for e in range(0, 10, 2): A(f"v_max3_u32 v28, v{b+e}, v{b+e+1}, v28")
    A("v_cmp_eq_u32 vcc, -1, v28")
    A("s_sub_u32 s5, s5, 1")
    A("s_cbranch_scc1 L_pollend")
    A("s_cbranch_vccnz L_poll")
    A("L_pollend:")
    st(5)
    A(f"v_max3_f32 v28, v10, v{PM+8}, v{PM+20}"); A(f"v_max_f32 v28, v28, v{PM+32}")
    A("v_sub_f32 v52, v10, v28")
    for j in range(3): A(f"v_sub_f32 v{53+j}, v{PM+12*j+8}, v28")
    for j in range(4): A(f"v_mul_f32 v{52+j}, s49, v{52+j}")
    for j in range(4): A(f"v_exp_f32 v{52+j}, v{52+j}")
    A("v_mul_f32 v29, v52, v11")
    for j in range(3): A(f"v_fmac_f32 v29, v{53+j}, v{PM+12*j+9}")
    A("v_rcp_f32 v29, v29"); A("s_nop 0")
    for j in range(4): A(f"v_mul_f32 v{52+j}, v{52+j}, v29")
    for w in range(4): A(f"v_mul_f32 v{48+w}, v{48+w}, v52")
    for e in range(8): A(f"v_mul_f32 v{O+e}, v52, v{O+e}")
    for j in range(3):
        for e in range(8): A(f"v_fmac_f32 v{O+e}, v{53+j}, v{PM+12*j+e}")
    A("s_barrier")
    st(6)
    ldsread()
    for w in range(4):
        A(f"s_waitcnt lgkmcnt({6-2*w})")
        for e in range(8): A(f"v_fmac_f32 v{O+e}, v{48+w}, v{RD+8*w+e}")
    for e in range(4): A(f"v_cvt_pk_bf16_f32 v{24+e}, v{O+2*e}, v{O+2*e+1}")
    A(f"buffer_store_dwordx4 v[24:27], v4, s[{SO}:{SO+3}], s7 offen {outsc}")
    if stamp:
        A("s_waitcnt vmcnt(0)"); st(7)
        A("L_hfin:")
        A("s_mov_b32 s3, 4")
        A("L_fin:")
        A("s_waitcnt lgkmcnt(0)")
        A(f"s_mov_b32 s{SX+2}, 0x20000000"); A(f"s_mov_b32 s{SX+3}, 0x20000")
        A(f"s_mul_i32 s51, s2, 5"); A("s_add_u32 s51, s51, s3"); A("s_lshl_b32 s51, s51, 5"); A("s_add_u32 s51, s51, 0x1000000")
        for i in range(8): A(f"v_mov_b32 v{32+i}, s{60+2*i}")
        A("v_mov_b32 v31, 0"); A("s_mov_b64 exec, 1")
        A(f"buffer_store_dwordx4 v[32:35], v31, s[{SX}:{SX+3}], s51 offen")
        A(f"buffer_store_dwordx4 v[36:39], v31, s[{SX}:{SX+3}], s51 offen offset:16")
    A("L_done:"); A("s_endpgm")
    A('.section .rodata,"a"'); A(".p2align 6")
    need = max(nv, PM + 36)
    accum = (need + 3) // 4 * 4
    A(f".amdhsa_kernel {KN}")
    A(f"  .amdhsa_next_free_vgpr {accum}"); A("  .amdhsa_next_free_sgpr 80"); A(f"  .amdhsa_accum_offset {accum}")
    A("  .amdhsa_group_segment_fixed_size 0"); A("  .amdhsa_kernarg_size 72"); A("  .amdhsa_user_sgpr_count 2")
    A("  .amdhsa_user_sgpr_kernarg_segment_ptr 1"); A("  .amdhsa_system_sgpr_workgroup_id_x 1")
    A("  .amdhsa_float_denorm_mode_32 3")
    A(".end_amdhsa_kernel")
    return "\n".join(L) + "\n"
if __name__ == "__main__":
    name = sys.argv[1]
    kw = {}
    for x in sys.argv[2:]:
        k, v = x.split("=")
        if k != 'prof':
            try: v = int(v)
            except: pass
        if k.endswith("flags") or k.endswith("sc"): v = v.replace("+", " ").replace("none", "")
        kw[k] = v
    open(name, "w").write(gen(**kw))
```

```python
import sys, struct, math
KN = "standalone__tree_speculative_verify_tree_attention_over_candidate_token_tree__decode_kernel"
HEADER = open("standalone__tree_speculative_verify_tree_attention_over_candidate_token_tree__decode.s.ref").read().split("; Override launch geometry")[0]
def f2u(x): return struct.unpack("<I", struct.pack("<f", x))[0]
CEXP = f2u(0.0625 * 1.4426950408889634)

def gen(depth=5, dmax=7, slots=12, flags="nt", lds=90000, stamp=0, xb=6, outsc="", noclear=0,
        ka=40, kd=44, r0=64, a0=4, r1=112, a1=16, sh=4, boost=1, last=0, prof=None, rsh=0, rmask=0, rmul=1, d0=0, n0=0, dend=0, nend=0, dlow=0, base=0, wg="19,20,21,22,23,24,25,26"):
    nsplit, nwaves = 4, 4
    nwg = 256
    nstep = 64
    wgb = [int(x) for x in wg.split(",")]
    holes = [b for b in wgb if b < 21]
    stepb = [b for b in range(13, 21) if b not in holes]
    assert len(stepb) == 6 and sorted(wgb) == sorted(holes + list(range(21, 27)))
    mate = [1 << wgb.index(h) for h in holes]
    def soff(s_): return sum(((s_ >> i) & 1) << b for i, b in enumerate(stepb))
    def basecalc(dst, tmp):
        groups = []; i = 0
        while i < 8:
            j = i
            while j + 1 < 8 and wgb[j + 1] == wgb[j] + 1: j += 1
            groups.append((i, j)); i = j + 1
        for n_, (i, j) in enumerate(groups):
            m = ((1 << (j - i + 1)) - 1) << i
            r = dst if n_ == 0 else tmp
            A(f"s_and_b32 {r}, s2, {m:#x}"); A(f"s_lshl_b32 {r}, {r}, {wgb[i]-i}")
            if n_: A(f"s_or_b32 {dst}, {dst}, {tmp}")
    nld = nstep * 2
    L = []; A = L.append
    ldsb = max(lds, 128 + 8192)
    LACC = 128
    A(HEADER.rstrip())
    A(f"; @launch grid=({nwg},1,1) block=(320,1,1) lds={ldsb}")
    A('.amdgcn_target "amdgcn-amd-amdhsa--gfx950"')
    A(".text"); A(f".globl {KN}"); A(".p2align 8"); A(f".type {KN},@function"); A(f"{KN}:")
    VOK, VOV, VOQ = 1, 2, 3
    VMASK = 4
    VL, VM = 8, 9
    VLA, VLM = 10, 11
    ACC = 12
    VA = 20
    VQ = 32
    VD = 40
    VR = 56
    VS = VR + 4 * slots
    nv = VS + nstep
    assert nv <= 256
    SK, SV, SQ, SX = 12, 16, 20, 28
    pp = [int(x) for x in prof.split(",")] if prof else None
    mode = {"stream": True}
    def st(i, force=False):
        if pp and mode["stream"] and i >= 1 and not force: return
        if stamp: A(f"s_memrealtime s[{60+2*i}:{61+2*i}]")
    st(0)
    A(f"s_load_dwordx2 s[{SK}:{SK+1}], s[0:1], 8")
    A(f"s_load_dwordx2 s[{SX}:{SX+1}], s[0:1], 64")
    A(f"s_load_dwordx2 s[{SQ}:{SQ+1}], s[0:1], 0")
    A(f"s_load_dwordx2 s[{SV}:{SV+1}], s[0:1], 16")
    A(f"s_cmp_ge_u32 s2, {nwg}"); A("s_cbranch_scc1 L_done")
    basecalc("s47", "s46")
    A("v_lshrrev_b32 v31, 6, v0")
    A("v_cmp_gt_u32 vcc, 4, v31")
    A("v_and_b32 v28, 3, v0")
    A("v_bfe_u32 v29, v0, 4, 2")
    A("s_cbranch_vccnz L_stream")
    A("v_and_b32 v1, 63, v0")
    A("v_lshlrev_b32 v4, 4, v1")
    for r in range(4): A(f"v_mov_b32 v{12+r}, -1")
    A(f"s_mov_b32 s{SX+2}, {nwg*4096}"); A(f"s_mov_b32 s{SX+3}, 0x20000")
    A("s_lshl_b32 s50, s2, 12")
    A("s_waitcnt lgkmcnt(0)")
    if not noclear:
        A(f"buffer_store_dwordx4 v[12:15], v4, s[{SX}:{SX+3}], s50 offen sc1")
        A(f"buffer_store_dwordx4 v[12:15], v4, s[{SX}:{SX+3}], s50 offen offset:1024 sc1")
        A("s_mov_b64 exec, 1")
        A(f"buffer_store_dwordx4 v[12:15], v4, s[{SX}:{SX+3}], s50 offen offset:2048 sc1")
        A("s_mov_b64 exec, -1")
    A("s_branch L_helper")
    A("L_stream:")
    A("v_lshl_add_u32 v28, v29, 2, v28")
    A("v_lshlrev_b32 v28, 4, v28")
    A("v_bfe_u32 v30, v0, 2, 2")
    A("v_lshl_add_u32 v30, v31, 2, v30")
    A(f"v_lshl_add_u32 v{VOK}, v30, 9, v28")
    A(f"s_mov_b32 s{SK+2}, 0x8000000"); A(f"s_mov_b32 s{SK+3}, 0x20000")
    A("s_waitcnt lgkmcnt(0)")
    st(1)
    n = 2 * nld
    stride = nwaves * 2048
    cur = {"issued": 0}
    order = []
    def load1():
        i = cur["issued"]
        assert i < n
        cur["issued"] = i + 1
        tn = "k" if i < nld else "v"
        s, hf = divmod(i % nld, 2)
        so = "s47" if s == 0 else "s48"
        if hf == 0 and s > 0: A(f"s_add_u32 s48, s47, {soff(s):#x}")
        r = VR + (i % slots) * 4
        if tn == "k": A(f"buffer_load_dwordx4 v[{r}:{r+3}], v{VOK}, s[{SK}:{SK+3}], {so} offen offset:{256*hf} {flags}")
        else: A(f"buffer_load_dwordx4 v[{r}:{r+3}], v{VOV}, s[{SV}:{SV+3}], {so} offen offset:{256*hf} {flags}")
        order.append(("d", i))
    def qloads():
        A("v_bfe_u32 v30, v0, 3, 1")
        A(f"v_lshl_add_u32 v{VOQ}, v30, 9, v28")
        A("s_lshr_b32 s7, s47, 21"); A("s_lshl_b32 s7, s7, 10")
        A(f"s_mov_b32 s{SQ+2}, 0x10000"); A(f"s_mov_b32 s{SQ+3}, 0x20000")
        for j in range(2):
            A(f"buffer_load_dwordx4 v[{VQ+4*j}:{VQ+4*j+3}], v{VOQ}, s[{SQ}:{SQ+3}], s7 offen offset:{256*j}")
            order.append(("q", j))
    done = {"pos": -1}
    def wait_for(op):
        p = order.index(op)
        if p <= done["pos"]: return
        done["pos"] = p
        A(f"s_waitcnt vmcnt({len(order) - 1 - p})")
    def sdep(j):
        if d0 and j < n0: return d0
        if dend and j >= n - nend: return dend
        return depth
    first = sdep(0)
    for i in range(first): load1()
    qloads()
    A(f"s_mov_b32 s{SV+2}, 0x8000000"); A(f"s_mov_b32 s{SV+3}, 0x20000")
    A("v_and_b32 v30, 15, v0")
    A("v_lshl_add_u32 v28, v31, 2, v29")
    A("v_lshlrev_b32 v28, 9, v28")
    A(f"v_lshl_add_u32 v{VOV}, v30, 4, v28")
    A(f"v_lshlrev_b32 v{VLA}, 5, v30")
    A("v_and_b32 v28, 1, v29"); A(f"v_lshl_add_u32 v{VLA}, v28, 4, v{VLA}")
    A("v_lshrrev_b32 v28, 5, v0"); A(f"v_lshl_add_u32 v{VLA}, v28, 10, v{VLA}")
    A("v_bfe_u32 v28, v0, 3, 1"); A("v_lshl_add_u32 v28, v31, 1, v28"); A(f"v_lshlrev_b32 v{VLM}, 3, v28")
    A(f"v_and_b32 v30, 1, v0"); A("v_lshlrev_b32 v30, 4, v30"); A("v_mov_b32 v31, 0xffff"); A("v_lshlrev_b32 v30, v30, v31")
    A(f"v_bfe_u32 v29, v0, 1, 2")
    for j in range(4):
        A(f"v_cmp_eq_u32 vcc, {j}, v29"); A(f"v_mov_b32 v{ACC+2*j}, 0"); A(f"v_mov_b32 v{ACC+2*j+1}, 0"); A(f"v_cndmask_b32 v{VMASK+j}, 0, v30, vcc")
    A(f"v_mov_b32 v{VL}, 0"); A(f"v_mov_b32 v{VM}, 0xff800000"); A("v_mov_b32 v31, 0")
    A(f"s_mov_b32 s49, {CEXP:#x}")
    cons = {"c": 0}
    ib = nld + 2 * kd if boost else n
    lab = {"n": 0}
    def advance(i):
        lag = depth
        while True:
            j = cur["issued"]
            ahead = dmax if j >= ib else sdep(j)
            if j >= n or j > i + ahead: break
            assert j - slots < cons["c"], (j, cons)
            if j >= ib:
                lab["n"] += 1
                A(f"s_cmp_gt_u32 s51, {(n - 1 - j) if last else (j - ib)}"); A(f"s_cbranch_scc1 L_b{lab['n']}")
                A(f"s_waitcnt vmcnt({(dlow or depth)-1})")
                A(f"L_b{lab['n']}:")
                wait_for(("d", j - dmax))
            else:
                wait_for(("d", j - sdep(j)))
            load1()
        wait_for(("d", i))
        if pp and i in pp: st(1 + pp.index(i), True)
    for i in range(first):
        wait_for(("d", i))
        if i == 0: st(2)
        j = cur["issued"]
        if j <= i + sdep(j) and j < slots: load1()
    wait_for(("q", 1))
    def diagop(d, dst, c):
        if c == 0: A(f"v_mov_b32_dpp v{dst}, v{d} quad_perm:[0,0,0,0] row_mask:0xf bank_mask:0xf")
        else: A(f"v_add_f32_dpp v{dst}, v{d+c}, v{dst} quad_perm:[{c},{c},{c},{c}] row_mask:0xf bank_mask:0xf")
    def chain_ops(h):
        for t in range(nstep):
            k = h - (2 * t + 3)
            if 0 <= k < 4: diagop(VD + 4 * (t % 4), VS + t, k)
            if k == 4 and t % 2 == 1: A(f"v_max3_f32 v{VM}, v{VS+t-1}, v{VS+t}, v{VM}")
    for s in range(nstep):
        d = VD + 4 * (s % 4)
        for hf in range(2):
            i = 2 * s + hf
            mark = len(L)
            advance(i)
            r = VR + (i % slots) * 4
            c = "0" if hf == 0 else f"v[{d}:{d+3}]"
            A(f"v_mfma_f32_16x16x32_bf16 v[{d}:{d+3}], v[{r}:{r+3}], v[{VQ+4*hf}:{VQ+4*hf+3}], {c}")
            cons["c"] = i + 1
            if len(L) - mark < 3 or i <= 5: A("s_nop 3")
            chain_ops(i)
    st(3)
    for h in range(2 * nstep, 2 * nstep + 6):
        A("s_nop 2" if h < 2 * nstep + 2 else "s_nop 1")
        chain_ops(h)
    def xrow(reg, op):
        A(f"v_mov_b32 v28, v{reg}"); A("s_nop 1"); A(f"v_permlane32_swap_b32 v{reg}, v28"); A("s_nop 1"); A(f"{op} v{reg}, v{reg}, v28")
        A(f"v_mov_b32 v28, v{reg}"); A("s_nop 1"); A(f"v_permlane16_swap_b32 v{reg}, v28"); A("s_nop 1"); A(f"{op} v{reg}, v{reg}, v28")
    xrow(VM, "v_max_f32")
    def mkP2(t):
        a, b = VS + t, VS + t + 1
        A(f"v_sub_f32 v28, v{a}, v{VM}"); A(f"v_sub_f32 v29, v{b}, v{VM}")
        A("v_mul_f32 v28, s49, v28"); A("v_mul_f32 v29, s49, v29")
        A("v_exp_f32 v28, v28"); A("v_exp_f32 v29, v29")
        A(f"v_cvt_pk_bf16_f32 v{a}, v28, v28"); A(f"v_add_f32 v{VL}, v{VL}, v28")
        A(f"v_cvt_pk_bf16_f32 v{b}, v29, v29"); A(f"v_add_f32 v{VL}, v{VL}, v29")
    def mkA(t):
        a = VA + 4 * (t % 2)
        for j in range(4): A(f"v_and_b32 v{a+j}, v{VS+t}, v{VMASK+j}")
    mkP2(0); mkA(0); A("s_nop 1")
    kread = kd - (depth + 1) // 2 - 1
    for k in range(nstep):
        a = VA + 4 * (k % 2)
        for hf in range(2):
            i = nld + 2 * k + hf
            advance(i)
            r = VR + (i % slots) * 4
            A(f"v_mfma_f32_16x16x32_bf16 v[{ACC+4*hf}:{ACC+4*hf+3}], v[{a}:{a+3}], v[{r}:{r+3}], v[{ACC+4*hf}:{ACC+4*hf+3}]")
            cons["c"] = i + 1
            if hf == 0 and k + 1 < nstep: mkA(k + 1)
            if hf == 1 and 2 * k + 2 < nstep: mkP2(2 * k + 2)
            if hf == 1 and 2 * k + 2 == nstep:
                xrow(VL, "v_add_f32")
                A(f"ds_write2_b32 v{VLM}, v{VM}, v{VL} offset0:0 offset1:1")
            if boost and hf == 1 and k == ka - (depth + 1) // 2 - 1: A("s_barrier")
            if boost and hf == 0 and k == kread: A("ds_read_b32 v30, v31 offset:64")
            if boost and hf == 1 and k == kread:
                A("s_waitcnt lgkmcnt(0)"); A("v_readfirstlane_b32 s51, v30")
                if stamp: A("s_mov_b32 s72, s51")
            if hf == 1 and k == nstep - 1 - xb:
                A("s_waitcnt lgkmcnt(0)"); A("s_barrier")
            if hf == 0 and k + 1 == nstep:
                A("s_nop 7"); A(f"ds_write_b128 v{VLA}, v[{ACC}:{ACC+3}] offset:{LACC}")
    st(4)
    A("s_nop 7")
    A(f"ds_write_b128 v{VLA}, v[{ACC+4}:{ACC+7}] offset:{512+LACC}")
    A("s_waitcnt lgkmcnt(0)"); A("s_barrier")
    if stamp:
        st(5); st(7)
        if boost: A("s_mul_i32 s72, s72, 100"); A("s_add_u32 s72, s72, s60")
        else: st(6)
        A("v_lshrrev_b32 v31, 6, v0"); A("s_nop 0"); A("v_readfirstlane_b32 s3, v31")
        A("s_branch L_fin")
    else:
        A("s_endpgm")
    mode["stream"] = False
    A("L_helper:")
    SY, SO = 32, 36
    A("s_lshr_b32 s4, s47, 21")
    A("s_load_dwordx4 s[40:43], s[0:1], 24")
    A("s_load_dwordx4 s[44:47], s[0:1], 40")
    A("s_load_dwordx2 s[52:53], s[0:1], 56")
    st(1)
    A("v_lshlrev_b32 v2, 5, v1")
    A("v_and_b32 v5, 0x1f0, v4")
    A("s_lshl_b32 s7, s4, 10"); A("s_lshl_b32 s26, s4, 9")
    A(f"s_mov_b32 s49, {CEXP:#x}")
    A("s_lshr_b32 s27, s4, 4"); A("s_lshl_b32 s27, s27, 2")
    A("v_lshrrev_b32 v7, 5, v1"); A("v_lshlrev_b32 v7, 3, v7")
    A("v_mov_b32 v28, 0"); A(f"v_mov_b32 v29, {base}"); A("ds_write_b32 v28, v29 offset:64")
    VT8 = 32
    A("v_mov_b32 v6, 0xff800000")
    for e in range(8): A(f"v_mov_b32 v{VT8+e}, 0")
    A("s_waitcnt lgkmcnt(0)")
    def srd(d, b, nb):
        A(f"s_mov_b32 s{d}, s{b}"); A(f"s_mov_b32 s{d+1}, s{b+1}"); A(f"s_mov_b32 s{d+2}, {nb}"); A(f"s_mov_b32 s{d+3}, 0x20000")
    A(f"s_and_b32 s5, s2, {mate[0] | mate[1]}"); A("s_cbranch_scc1 L_notree")
    A("s_load_dword s27, s[44:45], s27")
    A(f"s_mov_b32 s{SQ+2}, 0x10000"); A(f"s_mov_b32 s{SQ+3}, 0x20000")
    A(f"buffer_load_dwordx4 v[16:19], v4, s[{SQ}:{SQ+3}], s7 offen")
    srd(SY, 40, 32768)
    A(f"buffer_load_dwordx4 v[20:23], v5, s[{SY}:{SY+3}], s26 offen")
    srd(SO, 42, 32768)
    A(f"buffer_load_dwordx4 v[24:27], v5, s[{SO}:{SO+3}], s26 offen")
    A("s_waitcnt vmcnt(0) lgkmcnt(0)")
    A("v_mov_b32 v6, 0")
    for j in range(4):
        A(f"v_lshlrev_b32 v28, 16, v{16+j}"); A(f"v_lshlrev_b32 v29, 16, v{20+j}"); A("v_fmac_f32 v6, v28, v29")
        A(f"v_and_b32 v28, 0xffff0000, v{16+j}"); A(f"v_and_b32 v29, 0xffff0000, v{20+j}"); A("v_fmac_f32 v6, v28, v29")
    for s_ in (8, 4, 2, 1):
        A("s_nop 1"); A(f"v_add_f32_dpp v6, v6, v6 row_ror:{s_} row_mask:0xf bank_mask:0xf")
    A("v_mov_b32 v28, v6"); A("s_nop 1"); A("v_permlane16_swap_b32 v6, v28"); A("s_nop 1"); A("v_add_f32 v6, v6, v28")
    A("s_bitcmp1_b32 s4, 3")
    A("s_cselect_b32 s51, 0, 16"); A("s_lshl_b32 s27, s27, s51"); A("s_and_b32 s27, s27, 0xffff0000")
    A("v_mov_b32 v29, s27"); A("v_sub_f32 v29, 1.0, v29")
    A(f"v_mul_f32 v29, {f2u(-1.6e10):#x}, v29")
    A("v_add_f32 v6, v6, v29")
    for j in range(4):
        A(f"v_lshlrev_b32 v{VT8+2*j}, 16, v{24+j}"); A(f"v_and_b32 v{VT8+2*j+1}, 0xffff0000, v{24+j}")
    A("L_notree:")
    srd(SO, 46, 65536)
    A("s_lshl_b32 s51, s4, 2"); A("v_mov_b32 v8, s51"); A("v_mov_b32 v9, 1")
    A("s_mov_b32 s56, -2")
    A("s_waitcnt vmcnt(0)")
    st(2)
    if boost:
        A("s_and_b32 s51, s51, 0x80"); A("v_mov_b32 v28, s51"); A("v_mov_b32 v29, 0x10000")
        A("s_barrier")
        A("s_mov_b64 exec, 1")
        A("global_atomic_add v29, v28, v29, s[52:53] sc0")
        A("s_waitcnt vmcnt(0)")
        A("v_lshrrev_b32 v29, 16, v29")
        A(f"v_subrev_u32 v30, {r0}, v29"); A("v_max_i32 v30, 0, v30"); A(f"v_mul_u32_u24 v30, {a0}, v30")
        A(f"v_subrev_u32 v31, {r1}, v29"); A("v_max_i32 v31, 0, v31"); A(f"v_mul_u32_u24 v31, {a1}, v31")
        A("v_add_u32 v30, v30, v31"); A(f"v_lshrrev_b32 v30, {sh}, v30")
        A("v_mov_b32 v28, 0")
        A("ds_write_b32 v28, v30 offset:64")
        A("s_mov_b64 exec, -1")
    A("s_barrier")
    st(3)
    A("s_mov_b64 exec, 1")
    A("global_atomic_add v9, v8, v9, s[52:53] sc0")
    A("s_mov_b64 exec, -1")
    MW = 40
    for w in range(4): A(f"ds_read_b64 v[{MW+2*w}:{MW+2*w+1}], v7 offset:{16*w}")
    A("s_waitcnt lgkmcnt(0)")
    A(f"v_max3_f32 v10, v{MW}, v{MW+2}, v{MW+4}"); A(f"v_max3_f32 v10, v10, v{MW+6}, v6")
    for w in range(4): A(f"v_sub_f32 v{48+w}, v{MW+2*w}, v10")
    A("v_sub_f32 v52, v6, v10")
    for w in range(5): A(f"v_mul_f32 v{48+w}, s49, v{48+w}")
    for w in range(5): A(f"v_exp_f32 v{48+w}, v{48+w}")
    A("s_nop 0")
    A(f"v_fma_f32 v11, v48, v{MW+1}, v52")
    for w in range(1, 4): A(f"v_fmac_f32 v11, v{48+w}, v{MW+2*w+1}")
    O = 12
    for e in range(8): A(f"v_mul_f32 v{O+e}, v52, v{VT8+e}")
    A("v_min_u32 v10, s56, v10"); A("v_min_u32 v11, s56, v11")
    A("s_waitcnt vmcnt(0)")
    A("v_readfirstlane_b32 s51, v9")
    st(4)
    A("s_and_b32 s51, s51, 7")
    A("s_cmp_eq_u32 s51, 3"); A("s_cbranch_scc1 L_comb")
    RD = 64
    def ldsread():
        for w in range(4):
            A(f"ds_read_b128 v[{RD+8*w}:{RD+8*w+3}], v2 offset:{LACC+2048*w}")
            A(f"ds_read_b128 v[{RD+8*w+4}:{RD+8*w+7}], v2 offset:{LACC+2048*w+16}")
    A("s_mov_b32 exec_lo, 1"); A("s_mov_b32 exec_hi, 1")
    A(f"buffer_store_dwordx2 v[10:11], v7, s[{SX}:{SX+3}], s50 offen offset:2048 sc1")
    A("s_mov_b64 exec, -1")
    A("s_barrier")
    st(5)
    ldsread()
    for w in range(4):
        A(f"s_waitcnt lgkmcnt({6-2*w})")
        for e in range(8): A(f"v_fmac_f32 v{O+e}, v{48+w}, v{RD+8*w+e}")
    for e in range(4): A(f"v_min_u32 v{O+e}, s56, v{O+e}")
    A(f"buffer_store_dwordx4 v[{O}:{O+3}], v4, s[{SX}:{SX+3}], s50 offen sc1")
    for e in range(4, 8): A(f"v_min_u32 v{O+e}, s56, v{O+e}")
    A(f"buffer_store_dwordx4 v[{O+4}:{O+7}], v4, s[{SX}:{SX+3}], s50 offen offset:1024 sc1")
    if stamp:
        st(6); A("s_waitcnt vmcnt(0)"); st(7); A("s_branch L_hfin")
    else: A("s_endpgm")
    A("L_comb:")
    for j, mk_ in enumerate((mate[0], mate[1], mate[0] | mate[1])):
        A(f"s_xor_b32 s{57+j}, s50, {mk_ << 12:#x}")
    PM = 96
    A("s_mov_b32 s5, 0x100000")
    A("L_poll:")
    for j in range(3):
        b = PM + 12 * j
        A(f"buffer_load_dwordx4 v[{b}:{b+3}], v4, s[{SX}:{SX+3}], s{57+j} offen sc1")
        A(f"buffer_load_dwordx4 v[{b+4}:{b+7}], v4, s[{SX}:{SX+3}], s{57+j} offen offset:1024 sc1")
        A(f"buffer_load_dwordx2 v[{b+8}:{b+9}], v7, s[{SX}:{SX+3}], s{57+j} offen offset:2048 sc1")
    A("v_mov_b32 v28, 0")
    for j in range(3):
        b = PM + 12 * j
        A(f"s_waitcnt vmcnt({6-3*j})")
        for e in range(0, 10, 2): A(f"v_max3_u32 v28, v{b+e}, v{b+e+1}, v28")
    A("v_cmp_eq_u32 vcc, -1, v28")
    A("s_sub_u32 s5, s5, 1")
    A("s_cbranch_scc1 L_pollend")
    A("s_cbranch_vccnz L_poll")
    A("L_pollend:")
    st(5)
    A(f"v_max3_f32 v28, v10, v{PM+8}, v{PM+20}"); A(f"v_max_f32 v28, v28, v{PM+32}")
    A("v_sub_f32 v52, v10, v28")
    for j in range(3): A(f"v_sub_f32 v{53+j}, v{PM+12*j+8}, v28")
    for j in range(4): A(f"v_mul_f32 v{52+j}, s49, v{52+j}")
    for j in range(4): A(f"v_exp_f32 v{52+j}, v{52+j}")
    A("v_mul_f32 v29, v52, v11")
    for j in range(3): A(f"v_fmac_f32 v29, v{53+j}, v{PM+12*j+9}")
    A("v_rcp_f32 v29, v29"); A("s_nop 0")
    for j in range(4): A(f"v_mul_f32 v{52+j}, v{52+j}, v29")
    for w in range(4): A(f"v_mul_f32 v{48+w}, v{48+w}, v52")
    for e in range(8): A(f"v_mul_f32 v{O+e}, v52, v{O+e}")
    for j in range(3):
        for e in range(8): A(f"v_fmac_f32 v{O+e}, v{53+j}, v{PM+12*j+e}")
    A("s_barrier")
    st(6)
    ldsread()
    for w in range(4):
        A(f"s_waitcnt lgkmcnt({6-2*w})")
        for e in range(8): A(f"v_fmac_f32 v{O+e}, v{48+w}, v{RD+8*w+e}")
    for e in range(4): A(f"v_cvt_pk_bf16_f32 v{24+e}, v{O+2*e}, v{O+2*e+1}")
    A(f"buffer_store_dwordx4 v[24:27], v4, s[{SO}:{SO+3}], s7 offen {outsc}")
    if stamp:
        A("s_waitcnt vmcnt(0)"); st(7)
        A("L_hfin:")
        A("s_mov_b32 s3, 4")
        A("L_fin:")
        A("s_waitcnt lgkmcnt(0)")
        A(f"s_mov_b32 s{SX+2}, 0x20000000"); A(f"s_mov_b32 s{SX+3}, 0x20000")
        A(f"s_mul_i32 s51, s2, 5"); A("s_add_u32 s51, s51, s3"); A("s_lshl_b32 s51, s51, 5"); A("s_add_u32 s51, s51, 0x1000000")
        for i in range(8): A(f"v_mov_b32 v{32+i}, s{60+2*i}")
        A("v_mov_b32 v31, 0"); A("s_mov_b64 exec, 1")
        A(f"buffer_store_dwordx4 v[32:35], v31, s[{SX}:{SX+3}], s51 offen")
        A(f"buffer_store_dwordx4 v[36:39], v31, s[{SX}:{SX+3}], s51 offen offset:16")
    A("L_done:"); A("s_endpgm")
    A('.section .rodata,"a"'); A(".p2align 6")
    need = max(nv, PM + 36)
    accum = (need + 3) // 4 * 4
    A(f".amdhsa_kernel {KN}")
    A(f"  .amdhsa_next_free_vgpr {accum}"); A("  .amdhsa_next_free_sgpr 80"); A(f"  .amdhsa_accum_offset {accum}")
    A("  .amdhsa_group_segment_fixed_size 0"); A("  .amdhsa_kernarg_size 72"); A("  .amdhsa_user_sgpr_count 2")
    A("  .amdhsa_user_sgpr_kernarg_segment_ptr 1"); A("  .amdhsa_system_sgpr_workgroup_id_x 1")
    A("  .amdhsa_float_denorm_mode_32 3")
    A(".end_amdhsa_kernel")
    return "\n".join(L) + "\n"
if __name__ == "__main__":
    name = sys.argv[1]
    kw = {}
    for x in sys.argv[2:]:
        k, v = x.split("=")
        if k not in ('prof', 'wg'):
            try: v = int(v)
            except: pass
        if k.endswith("flags") or k.endswith("sc"): v = v.replace("+", " ").replace("none", "")
        kw[k] = v
    open(name, "w").write(gen(**kw))
```

```python
import sys, struct, math
KN = "standalone__tree_speculative_verify_tree_attention_over_candidate_token_tree__decode_kernel"
HEADER = open("standalone__tree_speculative_verify_tree_attention_over_candidate_token_tree__decode.s.ref").read().split("; Override launch geometry")[0]
def f2u(x): return struct.unpack("<I", struct.pack("<f", x))[0]
CEXP = f2u(0.0625 * 1.4426950408889634)

def gen(depth=5, dmax=7, slots=12, flags="nt", lds=90000, stamp=0, xb=6, outsc="", noclear=0,
        ka=40, kd=44, r0=64, a0=4, r1=112, a1=16, sh=4, boost=1, last=0, prof=None, rsh=0, rmask=0, rmul=1, d0=0, n0=0, dend=0, nend=0, dlow=0, base=0, wg="19,20,21,22,23,24,25,26", sel=-1, mult=8, dop="max", xcheck=0, per4=0):
    nsplit, nwaves = 4, 4
    nwg = 256
    nstep = 64
    wgb = [int(x) for x in wg.split(",")]
    holes = [b for b in wgb if b < 21]
    stepb = [b for b in range(13, 21) if b not in holes]
    assert len(stepb) == 6 and sorted(wgb) == sorted(holes + list(range(21, 27)))
    mate = [1 << wgb.index(h) for h in holes]
    def soff(s_): return sum(((s_ >> i) & 1) << b for i, b in enumerate(stepb))
    def basecalc(dst, tmp):
        groups = []; i = 0
        while i < 8:
            j = i
            while j + 1 < 8 and wgb[j + 1] == wgb[j] + 1: j += 1
            groups.append((i, j)); i = j + 1
        for n_, (i, j) in enumerate(groups):
            m = ((1 << (j - i + 1)) - 1) << i
            r = dst if n_ == 0 else tmp
            A(f"s_and_b32 {r}, s2, {m:#x}"); A(f"s_lshl_b32 {r}, {r}, {wgb[i]-i}")
            if n_: A(f"s_or_b32 {dst}, {dst}, {tmp}")
    nld = nstep * 2
    L = []; A = L.append
    ldsb = max(lds, 128 + 8192)
    LACC = 128
    A(HEADER.rstrip())
    if sel >= 0:
        A(f"; @launch kernel={KN} grid=({nwg},1,1) block=(320,1,1) lds={ldsb}")
        A(f"; @launch kernel=diag_kernel grid=(1,1,1) block=(64,1,1) lds=0")
    else:
        A(f"; @launch grid=({nwg},1,1) block=(320,1,1) lds={ldsb}")
    A('.amdgcn_target "amdgcn-amd-amdhsa--gfx950"')
    A(".text"); A(f".globl {KN}"); A(".p2align 8"); A(f".type {KN},@function"); A(f"{KN}:")
    VOK, VOV, VOQ = 1, 2, 3
    VMASK = 4
    VL, VM = 8, 9
    VLA, VLM = 10, 11
    ACC = 12
    VA = 20
    VQ = 32
    VD = 40
    VR = 56
    VS = VR + 4 * slots
    nv = VS + nstep
    assert nv <= 256
    SK, SV, SQ, SX = 12, 16, 20, 28
    pp = [int(x) for x in prof.split(",")] if prof else None
    mode = {"stream": True}
    def st(i, force=False):
        if pp and mode["stream"] and i >= 1 and not force: return
        if stamp: A(f"s_memrealtime s[{60+2*i}:{61+2*i}]")
    st(0)
    A(f"s_load_dwordx2 s[{SK}:{SK+1}], s[0:1], 8")
    A(f"s_load_dwordx2 s[{SX}:{SX+1}], s[0:1], 64")
    A(f"s_load_dwordx2 s[{SQ}:{SQ+1}], s[0:1], 0")
    A(f"s_load_dwordx2 s[{SV}:{SV+1}], s[0:1], 16")
    A(f"s_cmp_ge_u32 s2, {nwg}"); A("s_cbranch_scc1 L_done")
    basecalc("s47", "s46")
    A("v_lshrrev_b32 v31, 6, v0")
    A("v_cmp_gt_u32 vcc, 4, v31")
    A("v_and_b32 v28, 3, v0")
    A("v_bfe_u32 v29, v0, 4, 2")
    A("s_cbranch_vccnz L_stream")
    A("v_and_b32 v1, 63, v0")
    A("v_lshlrev_b32 v4, 4, v1")
    for r in range(4): A(f"v_mov_b32 v{12+r}, -1")
    A(f"s_mov_b32 s{SX+2}, {nwg*4096}"); A(f"s_mov_b32 s{SX+3}, 0x20000")
    A("s_lshl_b32 s50, s2, 12")
    A("s_waitcnt lgkmcnt(0)")
    if not noclear:
        A(f"buffer_store_dwordx4 v[12:15], v4, s[{SX}:{SX+3}], s50 offen sc1")
        A(f"buffer_store_dwordx4 v[12:15], v4, s[{SX}:{SX+3}], s50 offen offset:1024 sc1")
        A("s_mov_b64 exec, 1")
        A(f"buffer_store_dwordx4 v[12:15], v4, s[{SX}:{SX+3}], s50 offen offset:2048 sc1")
        A("s_mov_b64 exec, -1")
    A("s_branch L_helper")
    A("L_stream:")
    A("v_lshl_add_u32 v28, v29, 2, v28")
    A("v_lshlrev_b32 v28, 4, v28")
    A("v_bfe_u32 v30, v0, 2, 2")
    A("v_lshl_add_u32 v30, v31, 2, v30")
    A(f"v_lshl_add_u32 v{VOK}, v30, 9, v28")
    A(f"s_mov_b32 s{SK+2}, 0x8000000"); A(f"s_mov_b32 s{SK+3}, 0x20000")
    A("s_waitcnt lgkmcnt(0)")
    st(1)
    n = 2 * nld
    stride = nwaves * 2048
    cur = {"issued": 0}
    order = []
    def load1():
        i = cur["issued"]
        assert i < n
        cur["issued"] = i + 1
        tn = "k" if i < nld else "v"
        s, hf = divmod(i % nld, 2)
        so = "s47" if s == 0 else "s48"
        if hf == 0 and s > 0: A(f"s_add_u32 s48, s47, {soff(s):#x}")
        r = VR + (i % slots) * 4
        if tn == "k": A(f"buffer_load_dwordx4 v[{r}:{r+3}], v{VOK}, s[{SK}:{SK+3}], {so} offen offset:{256*hf} {flags}")
        else: A(f"buffer_load_dwordx4 v[{r}:{r+3}], v{VOV}, s[{SV}:{SV+3}], {so} offen offset:{256*hf} {flags}")
        order.append(("d", i))
    def qloads():
        A("v_bfe_u32 v30, v0, 3, 1")
        A(f"v_lshl_add_u32 v{VOQ}, v30, 9, v28")
        A("s_lshr_b32 s7, s47, 21"); A("s_lshl_b32 s7, s7, 10")
        A(f"s_mov_b32 s{SQ+2}, 0x10000"); A(f"s_mov_b32 s{SQ+3}, 0x20000")
        for j in range(2):
            A(f"buffer_load_dwordx4 v[{VQ+4*j}:{VQ+4*j+3}], v{VOQ}, s[{SQ}:{SQ+3}], s7 offen offset:{256*j}")
            order.append(("q", j))
    done = {"pos": -1}
    def wait_for(op):
        p = order.index(op)
        if p <= done["pos"]: return
        done["pos"] = p
        A(f"s_waitcnt vmcnt({len(order) - 1 - p})")
    def sdep(j):
        if d0 and j < n0: return d0
        if dend and j >= n - nend: return dend
        if per4 and j % per4 == per4 - 1: return depth - 1
        return depth
    first = sdep(0)
    for i in range(first): load1()
    qloads()
    A(f"s_mov_b32 s{SV+2}, 0x8000000"); A(f"s_mov_b32 s{SV+3}, 0x20000")
    A("v_and_b32 v30, 15, v0")
    A("v_lshl_add_u32 v28, v31, 2, v29")
    A("v_lshlrev_b32 v28, 9, v28")
    A(f"v_lshl_add_u32 v{VOV}, v30, 4, v28")
    A(f"v_lshlrev_b32 v{VLA}, 5, v30")
    A("v_and_b32 v28, 1, v29"); A(f"v_lshl_add_u32 v{VLA}, v28, 4, v{VLA}")
    A("v_lshrrev_b32 v28, 5, v0"); A(f"v_lshl_add_u32 v{VLA}, v28, 10, v{VLA}")
    A("v_bfe_u32 v28, v0, 3, 1"); A("v_lshl_add_u32 v28, v31, 1, v28"); A(f"v_lshlrev_b32 v{VLM}, 3, v28")
    A(f"v_and_b32 v30, 1, v0"); A("v_lshlrev_b32 v30, 4, v30"); A("v_mov_b32 v31, 0xffff"); A("v_lshlrev_b32 v30, v30, v31")
    A(f"v_bfe_u32 v29, v0, 1, 2")
    for j in range(4):
        A(f"v_cmp_eq_u32 vcc, {j}, v29"); A(f"v_mov_b32 v{ACC+2*j}, 0"); A(f"v_mov_b32 v{ACC+2*j+1}, 0"); A(f"v_cndmask_b32 v{VMASK+j}, 0, v30, vcc")
    A(f"v_mov_b32 v{VL}, 0"); A(f"v_mov_b32 v{VM}, 0xff800000"); A("v_mov_b32 v31, 0")
    A(f"s_mov_b32 s49, {CEXP:#x}")
    cons = {"c": 0}
    ib = nld + 2 * kd if boost else n
    lab = {"n": 0}
    def advance(i):
        lag = depth
        while True:
            j = cur["issued"]
            ahead = dmax if j >= ib else sdep(j)
            if j >= n or j > i + ahead: break
            assert j - slots < cons["c"], (j, cons)
            if j >= ib:
                lab["n"] += 1
                A(f"s_cmp_gt_u32 s51, {(n - 1 - j) if last else (j - ib)}"); A(f"s_cbranch_scc1 L_b{lab['n']}")
                A(f"s_waitcnt vmcnt({(dlow or depth)-1})")
                A(f"L_b{lab['n']}:")
                wait_for(("d", j - dmax))
            else:
                wait_for(("d", j - sdep(j)))
            load1()
        wait_for(("d", i))
        if pp and i in pp: st(1 + pp.index(i), True)
    for i in range(first):
        wait_for(("d", i))
        if i == 0: st(2)
        j = cur["issued"]
        if j <= i + sdep(j) and j < slots: load1()
    wait_for(("q", 1))
    def diagop(d, dst, c):
        if c == 0: A(f"v_mov_b32_dpp v{dst}, v{d} quad_perm:[0,0,0,0] row_mask:0xf bank_mask:0xf")
        else: A(f"v_add_f32_dpp v{dst}, v{d+c}, v{dst} quad_perm:[{c},{c},{c},{c}] row_mask:0xf bank_mask:0xf")
    def chain_ops(h):
        for t in range(nstep):
            k = h - (2 * t + 3)
            if 0 <= k < 4: diagop(VD + 4 * (t % 4), VS + t, k)
            if k == 4 and t % 2 == 1: A(f"v_max3_f32 v{VM}, v{VS+t-1}, v{VS+t}, v{VM}")
    for s in range(nstep):
        d = VD + 4 * (s % 4)
        for hf in range(2):
            i = 2 * s + hf
            mark = len(L)
            advance(i)
            r = VR + (i % slots) * 4
            c = "0" if hf == 0 else f"v[{d}:{d+3}]"
            A(f"v_mfma_f32_16x16x32_bf16 v[{d}:{d+3}], v[{r}:{r+3}], v[{VQ+4*hf}:{VQ+4*hf+3}], {c}")
            cons["c"] = i + 1
            if len(L) - mark < 3 or i <= 5: A("s_nop 3")
            chain_ops(i)
    st(3)
    for h in range(2 * nstep, 2 * nstep + 6):
        A("s_nop 2" if h < 2 * nstep + 2 else "s_nop 1")
        chain_ops(h)
    def xrow(reg, op):
        A(f"v_mov_b32 v28, v{reg}"); A("s_nop 1"); A(f"v_permlane32_swap_b32 v{reg}, v28"); A("s_nop 1"); A(f"{op} v{reg}, v{reg}, v28")
        A(f"v_mov_b32 v28, v{reg}"); A("s_nop 1"); A(f"v_permlane16_swap_b32 v{reg}, v28"); A("s_nop 1"); A(f"{op} v{reg}, v{reg}, v28")
    xrow(VM, "v_max_f32")
    def mkP2(t):
        a, b = VS + t, VS + t + 1
        A(f"v_sub_f32 v28, v{a}, v{VM}"); A(f"v_sub_f32 v29, v{b}, v{VM}")
        A("v_mul_f32 v28, s49, v28"); A("v_mul_f32 v29, s49, v29")
        A("v_exp_f32 v28, v28"); A("v_exp_f32 v29, v29")
        A(f"v_cvt_pk_bf16_f32 v{a}, v28, v28"); A(f"v_add_f32 v{VL}, v{VL}, v28")
        A(f"v_cvt_pk_bf16_f32 v{b}, v29, v29"); A(f"v_add_f32 v{VL}, v{VL}, v29")
    def mkA(t):
        a = VA + 4 * (t % 2)
        for j in range(4): A(f"v_and_b32 v{a+j}, v{VS+t}, v{VMASK+j}")
    mkP2(0); mkA(0); A("s_nop 1")
    kread = kd - (depth + 1) // 2 - 1
    for k in range(nstep):
        a = VA + 4 * (k % 2)
        for hf in range(2):
            i = nld + 2 * k + hf
            advance(i)
            r = VR + (i % slots) * 4
            A(f"v_mfma_f32_16x16x32_bf16 v[{ACC+4*hf}:{ACC+4*hf+3}], v[{a}:{a+3}], v[{r}:{r+3}], v[{ACC+4*hf}:{ACC+4*hf+3}]")
            cons["c"] = i + 1
            if hf == 0 and k + 1 < nstep: mkA(k + 1)
            if hf == 1 and 2 * k + 2 < nstep: mkP2(2 * k + 2)
            if hf == 1 and 2 * k + 2 == nstep:
                xrow(VL, "v_add_f32")
                A(f"ds_write2_b32 v{VLM}, v{VM}, v{VL} offset0:0 offset1:1")
            if boost and hf == 1 and k == ka - (depth + 1) // 2 - 1: A("s_barrier")
            if boost and hf == 0 and k == kread: A("ds_read_b32 v30, v31 offset:64")
            if boost and hf == 1 and k == kread:
                A("s_waitcnt lgkmcnt(0)"); A("v_readfirstlane_b32 s51, v30")
                if stamp: A("s_mov_b32 s72, s51")
            if hf == 1 and k == nstep - 1 - xb:
                A("s_waitcnt lgkmcnt(0)"); A("s_barrier")
            if hf == 0 and k + 1 == nstep:
                A("s_nop 7"); A(f"ds_write_b128 v{VLA}, v[{ACC}:{ACC+3}] offset:{LACC}")
    st(4)
    A("s_nop 7")
    A(f"ds_write_b128 v{VLA}, v[{ACC+4}:{ACC+7}] offset:{512+LACC}")
    A("s_waitcnt lgkmcnt(0)"); A("s_barrier")
    if stamp:
        st(5); st(7)
        if boost: A("s_mul_i32 s72, s72, 100"); A("s_add_u32 s72, s72, s60")
        else: st(6)
        A("v_lshrrev_b32 v31, 6, v0"); A("s_nop 0"); A("v_readfirstlane_b32 s3, v31")
        A("s_branch L_fin")
    else:
        A("s_endpgm")
    mode["stream"] = False
    A("L_helper:")
    SY, SO = 32, 36
    A("s_lshr_b32 s4, s47, 21")
    A("s_load_dwordx4 s[40:43], s[0:1], 24")
    A("s_load_dwordx4 s[44:47], s[0:1], 40")
    A("s_load_dwordx2 s[52:53], s[0:1], 56")
    st(1)
    A("v_lshlrev_b32 v2, 5, v1")
    A("v_and_b32 v5, 0x1f0, v4")
    A("s_lshl_b32 s7, s4, 10"); A("s_lshl_b32 s26, s4, 9")
    A(f"s_mov_b32 s49, {CEXP:#x}")
    A("s_lshr_b32 s27, s4, 4"); A("s_lshl_b32 s27, s27, 2")
    A("v_lshrrev_b32 v7, 5, v1"); A("v_lshlrev_b32 v7, 3, v7")
    A("v_mov_b32 v28, 0"); A(f"v_mov_b32 v29, {base}"); A("ds_write_b32 v28, v29 offset:64")
    VT8 = 32
    A("v_mov_b32 v6, 0xff800000")
    for e in range(8): A(f"v_mov_b32 v{VT8+e}, 0")
    A("s_waitcnt lgkmcnt(0)")
    def srd(d, b, nb):
        A(f"s_mov_b32 s{d}, s{b}"); A(f"s_mov_b32 s{d+1}, s{b+1}"); A(f"s_mov_b32 s{d+2}, {nb}"); A(f"s_mov_b32 s{d+3}, 0x20000")
    A(f"s_and_b32 s5, s2, {mate[0] | mate[1]}"); A("s_cbranch_scc1 L_notree")
    A("s_load_dword s27, s[44:45], s27")
    A(f"s_mov_b32 s{SQ+2}, 0x10000"); A(f"s_mov_b32 s{SQ+3}, 0x20000")
    A(f"buffer_load_dwordx4 v[16:19], v4, s[{SQ}:{SQ+3}], s7 offen")
    srd(SY, 40, 32768)
    A(f"buffer_load_dwordx4 v[20:23], v5, s[{SY}:{SY+3}], s26 offen")
    srd(SO, 42, 32768)
    A(f"buffer_load_dwordx4 v[24:27], v5, s[{SO}:{SO+3}], s26 offen")
    A("s_waitcnt vmcnt(0) lgkmcnt(0)")
    A("v_mov_b32 v6, 0")
    for j in range(4):
        A(f"v_lshlrev_b32 v28, 16, v{16+j}"); A(f"v_lshlrev_b32 v29, 16, v{20+j}"); A("v_fmac_f32 v6, v28, v29")
        A(f"v_and_b32 v28, 0xffff0000, v{16+j}"); A(f"v_and_b32 v29, 0xffff0000, v{20+j}"); A("v_fmac_f32 v6, v28, v29")
    for s_ in (8, 4, 2, 1):
        A("s_nop 1"); A(f"v_add_f32_dpp v6, v6, v6 row_ror:{s_} row_mask:0xf bank_mask:0xf")
    A("v_mov_b32 v28, v6"); A("s_nop 1"); A("v_permlane16_swap_b32 v6, v28"); A("s_nop 1"); A("v_add_f32 v6, v6, v28")
    A("s_bitcmp1_b32 s4, 3")
    A("s_cselect_b32 s51, 0, 16"); A("s_lshl_b32 s27, s27, s51"); A("s_and_b32 s27, s27, 0xffff0000")
    A("v_mov_b32 v29, s27"); A("v_sub_f32 v29, 1.0, v29")
    A(f"v_mul_f32 v29, {f2u(-1.6e10):#x}, v29")
    A("v_add_f32 v6, v6, v29")
    for j in range(4):
        A(f"v_lshlrev_b32 v{VT8+2*j}, 16, v{24+j}"); A(f"v_and_b32 v{VT8+2*j+1}, 0xffff0000, v{24+j}")
    A("L_notree:")
    srd(SO, 46, 65536)
    A("s_lshl_b32 s51, s4, 2"); A("v_mov_b32 v8, s51"); A("v_mov_b32 v9, 1")
    A("s_mov_b32 s56, -2")
    A("s_waitcnt vmcnt(0)")
    st(2)
    if boost:
        A("s_and_b32 s51, s51, 0x80"); A("v_mov_b32 v28, s51"); A("v_mov_b32 v29, 0x10000")
        A("s_barrier")
        A("s_mov_b64 exec, 1")
        A("global_atomic_add v29, v28, v29, s[52:53] sc0")
        A("s_waitcnt vmcnt(0)")
        A("v_lshrrev_b32 v29, 16, v29")
        A(f"v_subrev_u32 v30, {r0}, v29"); A("v_max_i32 v30, 0, v30"); A(f"v_mul_u32_u24 v30, {a0}, v30")
        A(f"v_subrev_u32 v31, {r1}, v29"); A("v_max_i32 v31, 0, v31"); A(f"v_mul_u32_u24 v31, {a1}, v31")
        A("v_add_u32 v30, v30, v31"); A(f"v_lshrrev_b32 v30, {sh}, v30")
        A("v_mov_b32 v28, 0")
        A("ds_write_b32 v28, v30 offset:64")
        A("s_mov_b64 exec, -1")
    A("s_barrier")
    st(3)
    A("s_mov_b64 exec, 1")
    A("global_atomic_add v9, v8, v9, s[52:53] sc0")
    A("s_mov_b64 exec, -1")
    MW = 40
    for w in range(4): A(f"ds_read_b64 v[{MW+2*w}:{MW+2*w+1}], v7 offset:{16*w}")
    A("s_waitcnt lgkmcnt(0)")
    A(f"v_max3_f32 v10, v{MW}, v{MW+2}, v{MW+4}"); A(f"v_max3_f32 v10, v10, v{MW+6}, v6")
    for w in range(4): A(f"v_sub_f32 v{48+w}, v{MW+2*w}, v10")
    A("v_sub_f32 v52, v6, v10")
    for w in range(5): A(f"v_mul_f32 v{48+w}, s49, v{48+w}")
    for w in range(5): A(f"v_exp_f32 v{48+w}, v{48+w}")
    A("s_nop 0")
    A(f"v_fma_f32 v11, v48, v{MW+1}, v52")
    for w in range(1, 4): A(f"v_fmac_f32 v11, v{48+w}, v{MW+2*w+1}")
    O = 12
    for e in range(8): A(f"v_mul_f32 v{O+e}, v52, v{VT8+e}")
    A("v_min_u32 v10, s56, v10"); A("v_min_u32 v11, s56, v11")
    A("s_waitcnt vmcnt(0)")
    A("v_readfirstlane_b32 s51, v9")
    st(4)
    A("s_and_b32 s51, s51, 7")
    A("s_cmp_eq_u32 s51, 3"); A("s_cbranch_scc1 L_comb")
    RD = 64
    def ldsread():
        for w in range(4):
            A(f"ds_read_b128 v[{RD+8*w}:{RD+8*w+3}], v2 offset:{LACC+2048*w}")
            A(f"ds_read_b128 v[{RD+8*w+4}:{RD+8*w+7}], v2 offset:{LACC+2048*w+16}")
    A("s_mov_b32 exec_lo, 1"); A("s_mov_b32 exec_hi, 1")
    A(f"buffer_store_dwordx2 v[10:11], v7, s[{SX}:{SX+3}], s50 offen offset:2048 sc1")
    A("s_mov_b64 exec, -1")
    A("s_barrier")
    st(5)
    ldsread()
    for w in range(4):
        A(f"s_waitcnt lgkmcnt({6-2*w})")
        for e in range(8): A(f"v_fmac_f32 v{O+e}, v{48+w}, v{RD+8*w+e}")
    for e in range(4): A(f"v_min_u32 v{O+e}, s56, v{O+e}")
    A(f"buffer_store_dwordx4 v[{O}:{O+3}], v4, s[{SX}:{SX+3}], s50 offen sc1")
    for e in range(4, 8): A(f"v_min_u32 v{O+e}, s56, v{O+e}")
    A(f"buffer_store_dwordx4 v[{O+4}:{O+7}], v4, s[{SX}:{SX+3}], s50 offen offset:1024 sc1")
    if stamp:
        st(6); A("s_waitcnt vmcnt(0)"); st(7); A("s_branch L_hfin")
    else: A("s_endpgm")
    A("L_comb:")
    for j, mk_ in enumerate((mate[0], mate[1], mate[0] | mate[1])):
        A(f"s_xor_b32 s{57+j}, s50, {mk_ << 12:#x}")
    PM = 96
    A("s_mov_b32 s5, 0x100000")
    A("L_poll:")
    for j in range(3):
        b = PM + 12 * j
        A(f"buffer_load_dwordx4 v[{b}:{b+3}], v4, s[{SX}:{SX+3}], s{57+j} offen sc1")
        A(f"buffer_load_dwordx4 v[{b+4}:{b+7}], v4, s[{SX}:{SX+3}], s{57+j} offen offset:1024 sc1")
        A(f"buffer_load_dwordx2 v[{b+8}:{b+9}], v7, s[{SX}:{SX+3}], s{57+j} offen offset:2048 sc1")
    A("v_mov_b32 v28, 0")
    for j in range(3):
        b = PM + 12 * j
        A(f"s_waitcnt vmcnt({6-3*j})")
        for e in range(0, 10, 2): A(f"v_max3_u32 v28, v{b+e}, v{b+e+1}, v28")
    A("v_cmp_eq_u32 vcc, -1, v28")
    A("s_sub_u32 s5, s5, 1")
    A("s_cbranch_scc1 L_pollend")
    A("s_cbranch_vccnz L_poll")
    A("L_pollend:")
    st(5)
    A(f"v_max3_f32 v28, v10, v{PM+8}, v{PM+20}"); A(f"v_max_f32 v28, v28, v{PM+32}")
    A("v_sub_f32 v52, v10, v28")
    for j in range(3): A(f"v_sub_f32 v{53+j}, v{PM+12*j+8}, v28")
    for j in range(4): A(f"v_mul_f32 v{52+j}, s49, v{52+j}")
    for j in range(4): A(f"v_exp_f32 v{52+j}, v{52+j}")
    A("v_mul_f32 v29, v52, v11")
    for j in range(3): A(f"v_fmac_f32 v29, v{53+j}, v{PM+12*j+9}")
    A("v_rcp_f32 v29, v29"); A("s_nop 0")
    for j in range(4): A(f"v_mul_f32 v{52+j}, v{52+j}, v29")
    for w in range(4): A(f"v_mul_f32 v{48+w}, v{48+w}, v52")
    for e in range(8): A(f"v_mul_f32 v{O+e}, v52, v{O+e}")
    for j in range(3):
        for e in range(8): A(f"v_fmac_f32 v{O+e}, v{53+j}, v{PM+12*j+e}")
    A("s_barrier")
    st(6)
    ldsread()
    for w in range(4):
        A(f"s_waitcnt lgkmcnt({6-2*w})")
        for e in range(8): A(f"v_fmac_f32 v{O+e}, v{48+w}, v{RD+8*w+e}")
    for e in range(4): A(f"v_cvt_pk_bf16_f32 v{24+e}, v{O+2*e}, v{O+2*e+1}")
    A(f"buffer_store_dwordx4 v[24:27], v4, s[{SO}:{SO+3}], s7 offen {outsc}")
    if stamp:
        A("s_waitcnt vmcnt(0)"); st(7)
        A("L_hfin:")
        A("s_mov_b32 s3, 4")
        A("L_fin:")
        A("s_waitcnt lgkmcnt(0)")
        A(f"s_mov_b32 s{SX+2}, 0x20000000"); A(f"s_mov_b32 s{SX+3}, 0x20000")
        A(f"s_mul_i32 s51, s2, 5"); A("s_add_u32 s51, s51, s3"); A("s_lshl_b32 s51, s51, 5"); A("s_add_u32 s51, s51, 0x1000000")
        if xcheck:
            A("s_getreg_b32 s72, hwreg(HW_REG_XCC_ID)"); A("s_xor_b32 s72, s72, s2"); A("s_and_b32 s72, s72, 7"); A("s_cselect_b32 s72, 100, 0")
        for i in range(8): A(f"v_mov_b32 v{32+i}, s{60+2*i}")
        A("v_mov_b32 v31, 0"); A("s_mov_b64 exec, 1")
        A(f"buffer_store_dwordx4 v[32:35], v31, s[{SX}:{SX+3}], s51 offen")
        A(f"buffer_store_dwordx4 v[36:39], v31, s[{SX}:{SX+3}], s51 offen offset:16")
    A("L_done:"); A("s_endpgm")
    if sel >= 0:
        per = 20
        A(".globl diag_kernel"); A(".p2align 8"); A(".type diag_kernel,@function"); A("diag_kernel:")
        A("s_cmp_ge_u32 s2, 1"); A("s_cbranch_scc1 L_done3")
        A("s_load_dwordx2 s[28:29], s[0:1], 64")
        A("v_lshlrev_b32 v1, 5, v0")
        A("s_mov_b32 s30, 0x20000000"); A("s_mov_b32 s31, 0x20000")
        A("s_waitcnt lgkmcnt(0)")
        A("s_mov_b32 s51, 0x1000000")
        for i in range(per):
            A(f"buffer_load_dword v{4+2*i}, v1, s[28:31], s51 offen")
            A(f"buffer_load_dword v{5+2*i}, v1, s[28:31], s51 offen offset:{4*sel}")
            A("s_add_u32 s51, s51, 2048")
        A("s_waitcnt vmcnt(0)")
        op = {"max": "max_u32", "min": "min_u32", "sum": "add_u32", "raw": "add_u32"}[dop]
        for i in range(1, per):
            A(f"v_min_u32 v4, v4, v{4+2*i}"); A(f"v_{op} v5, v5, v{5+2*i}")
        A("s_nop 1")
        A("v_readlane_b32 s4, v4, 0"); A("v_readlane_b32 s5, v5, 0")
        for l in range(1, 64):
            A(f"v_readlane_b32 s6, v4, {l}"); A(f"v_readlane_b32 s7, v5, {l}"); A("s_min_u32 s4, s4, s6"); A(f"s_{op} s5, s5, s7")
        if dop == "sum":
            A("s_mul_i32 s4, s4, 1280"); A("s_sub_u32 s5, s5, s4"); A(f"s_mul_i32 s5, s5, {mult}"); A("s_mul_hi_u32 s5, s5, 3355443")
        elif dop == "raw":
            A("s_lshr_b32 s5, s5, 4")
        else:
            A("s_sub_u32 s5, s5, s4"); A(f"s_mul_i32 s5, s5, {mult}")
        A("s_min_u32 s5, s5, 100000")
        A("s_memrealtime s[8:9]"); A("s_waitcnt lgkmcnt(0)")
        A("L_spin:"); A("s_memrealtime s[10:11]"); A("s_waitcnt lgkmcnt(0)"); A("s_sub_u32 s6, s10, s8"); A("s_cmp_lt_u32 s6, s5"); A("s_cbranch_scc1 L_spin")
        A("L_done3:"); A("s_endpgm")
    A('.section .rodata,"a"'); A(".p2align 6")
    need = max(nv, PM + 36)
    accum = (need + 3) // 4 * 4
    A(f".amdhsa_kernel {KN}")
    A(f"  .amdhsa_next_free_vgpr {accum}"); A("  .amdhsa_next_free_sgpr 80"); A(f"  .amdhsa_accum_offset {accum}")
    A("  .amdhsa_group_segment_fixed_size 0"); A("  .amdhsa_kernarg_size 72"); A("  .amdhsa_user_sgpr_count 2")
    A("  .amdhsa_user_sgpr_kernarg_segment_ptr 1"); A("  .amdhsa_system_sgpr_workgroup_id_x 1")
    A("  .amdhsa_float_denorm_mode_32 3")
    A(".end_amdhsa_kernel")
    if sel >= 0:
        A(".p2align 6"); A(".amdhsa_kernel diag_kernel")
        A("  .amdhsa_next_free_vgpr 64"); A("  .amdhsa_next_free_sgpr 80"); A("  .amdhsa_accum_offset 64")
        A("  .amdhsa_group_segment_fixed_size 0"); A("  .amdhsa_kernarg_size 72"); A("  .amdhsa_user_sgpr_count 2")
        A("  .amdhsa_user_sgpr_kernarg_segment_ptr 1"); A("  .amdhsa_system_sgpr_workgroup_id_x 1"); A(".end_amdhsa_kernel")
    return "\n".join(L) + "\n"
if __name__ == "__main__":
    name = sys.argv[1]
    kw = {}
    for x in sys.argv[2:]:
        k, v = x.split("=")
        if k not in ('prof', 'wg'):
            try: v = int(v)
            except: pass
        if k.endswith("flags") or k.endswith("sc"): v = v.replace("+", " ").replace("none", "")
        kw[k] = v
    open(name, "w").write(gen(**kw))
```

```python
import sys, struct, math
KN = "standalone__tree_speculative_verify_tree_attention_over_candidate_token_tree__decode_kernel"
HEADER = open("standalone__tree_speculative_verify_tree_attention_over_candidate_token_tree__decode.s.ref").read().split("; Override launch geometry")[0]
def f2u(x): return struct.unpack("<I", struct.pack("<f", x))[0]
CEXP = f2u(0.0625 * 1.4426950408889634)

def gen(depth=5, slots=16, flags="nt", lds=90000, stamp=0, xb=7, dend=8, nend=16,
        wg="22,23,26,14,20,21,24,25", sel=-1, mult=8, t3=0, ldsc="sc1", comments=1, sat=0):
    nwg = 256; nstep = 64; nld = 128; n = 256
    wgb = [int(x) for x in wg.split(",")]
    holes = [b for b in wgb if b < 21]
    stepb = [b for b in range(13, 21) if b not in holes]
    assert len(stepb) == 6 and sorted(wgb) == sorted(holes + list(range(21, 27)))
    mbit = [wgb.index(h) for h in holes]
    mate = [1 << b for b in mbit]
    def soff(s_): return sum(((s_ >> i) & 1) << b for i, b in enumerate(stepb))
    L = []; A = L.append
    def C(t):
        if comments: A("; " + t)
    LACC = 128
    REGB = 0x100000
    ldsb = max(lds, LACC + 8192)
    A(HEADER.rstrip())
    if sel >= 0:
        A(f"; @launch kernel={KN} grid=({nwg},1,1) block=(320,1,1) lds={ldsb}")
        A(f"; @launch kernel=diag_kernel grid=(1,1,1) block=(64,1,1) lds=0")
    else:
        A(f"; @launch grid=({nwg},1,1) block=(320,1,1) lds={ldsb}")
    A('.amdgcn_target "amdgcn-amd-amdhsa--gfx950"')
    A(".text"); A(f".globl {KN}"); A(".p2align 8"); A(f".type {KN},@function"); A(f"{KN}:")
    VOK, VOV, VOQ = 1, 2, 3
    VMASK = 4; VL, VM = 8, 9; VLA, VLM = 10, 11; ACC = 12; VA = 20; VQ = 32; VD = 40; VR = 56
    VS = VR + 4 * slots
    nv = VS + nstep
    assert nv <= 256
    SK, SV, SQ, SX = 12, 16, 20, 28
    def st(i):
        if stamp: A(f"s_memrealtime s[{60+2*i}:{61+2*i}]")
    def basecalc(dst, tmp):
        groups = []; i = 0
        while i < 8:
            j = i
            while j + 1 < 8 and wgb[j + 1] == wgb[j] + 1: j += 1
            groups.append((i, j)); i = j + 1
        for n_, (i, j) in enumerate(groups):
            m = ((1 << (j - i + 1)) - 1) << i
            r = dst if n_ == 0 else tmp
            A(f"s_and_b32 {r}, s2, {m:#x}"); A(f"s_lshl_b32 {r}, {r}, {wgb[i]-i}")
            if n_: A(f"s_or_b32 {dst}, {dst}, {tmp}")
    st(0)
    C("waves 0-3 stream K then V (256 keys each); wave 4 merges partial results")
    A(f"s_load_dwordx2 s[{SK}:{SK+1}], s[0:1], 8")
    A(f"s_load_dwordx2 s[{SQ}:{SQ+1}], s[0:1], 0")
    A(f"s_load_dwordx2 s[{SV}:{SV+1}], s[0:1], 16")
    A("v_lshrrev_b32 v31, 6, v0")
    A("v_cmp_lt_u32 vcc, 3, v31")
    A(f"s_cmpk_ge_u32 s2, {nwg}"); A("s_cbranch_scc1 L_done")
    C("s47 = byte offset of this workgroup's slice inside k_cache / v_cache (bits 26:21 = (b,hkv) pair)")
    basecalc("s47", "s46")
    A("s_cbranch_vccnz L_helper")
    A("v_and_b32 v28, 3, v0")
    A("v_bfe_u32 v29, v0, 4, 2")
    A("v_lshl_add_u32 v28, v29, 2, v28")
    A("v_lshlrev_b32 v28, 4, v28")
    A("v_bfe_u32 v30, v0, 2, 2")
    A("v_lshl_add_u32 v30, v31, 2, v30")
    A(f"v_lshl_add_u32 v{VOK}, v30, 9, v28")
    A(f"s_brev_b32 s{SK+2}, 16"); A(f"s_mov_b32 s{SK+3}, 0x20000")
    cur = {"issued": 0}; order = []
    def load1():
        i = cur["issued"]; assert i < n
        cur["issued"] = i + 1
        tn = "k" if i < nld else "v"
        s, hf = divmod(i % nld, 2)
        so = "s47" if s == 0 else "s48"
        if hf == 0 and s > 0: A(f"s_add_u32 s48, s47, {soff(s):#x}")
        r = VR + (i % slots) * 4
        if tn == "k": A(f"buffer_load_dwordx4 v[{r}:{r+3}], v{VOK}, s[{SK}:{SK+3}], {so} offen offset:{256*hf} {flags}")
        else: A(f"buffer_load_dwordx4 v[{r}:{r+3}], v{VOV}, s[{SV}:{SV+3}], {so} offen offset:{256*hf} {flags}")
        order.append(("d", i))
    done = {"pos": -1}
    def wait_for(op):
        p = order.index(op)
        if p <= done["pos"]: return
        done["pos"] = p
        A(f"s_waitcnt vmcnt({len(order) - 1 - p})")
    def sdep(j):
        if dend and j >= n - nend: return dend
        return depth
    A("s_waitcnt lgkmcnt(0)")
    st(1)
    for i in range(depth): load1()
    A("v_bfe_u32 v30, v0, 3, 1")
    A(f"v_lshl_add_u32 v{VOQ}, v30, 9, v28")
    A("s_lshr_b32 s7, s47, 21"); A("s_lshl_b32 s7, s7, 10")
    A(f"s_mov_b32 s{SQ+2}, 0x10000"); A(f"s_mov_b32 s{SQ+3}, 0x20000")
    for j in range(2):
        A(f"buffer_load_dwordx4 v[{VQ+4*j}:{VQ+4*j+3}], v{VOQ}, s[{SQ}:{SQ+3}], s7 offen offset:{256*j}")
        order.append(("q", j))
    A(f"s_brev_b32 s{SV+2}, 16"); A(f"s_mov_b32 s{SV+3}, 0x20000")
    A("v_and_b32 v30, 15, v0")
    A("v_lshl_add_u32 v28, v31, 2, v29")
    A("v_lshlrev_b32 v28, 9, v28")
    A(f"v_lshl_add_u32 v{VOV}, v30, 4, v28")
    A(f"v_lshlrev_b32 v{VLA}, 5, v30")
    A("v_and_b32 v28, 1, v29"); A(f"v_lshl_add_u32 v{VLA}, v28, 4, v{VLA}")
    A("v_lshrrev_b32 v28, 5, v0"); A(f"v_lshl_add_u32 v{VLA}, v28, 10, v{VLA}")
    A("v_bfe_u32 v28, v0, 3, 1"); A("v_lshl_add_u32 v28, v31, 1, v28"); A(f"v_lshlrev_b32 v{VLM}, 3, v28")
    A(f"v_and_b32 v30, 1, v0"); A("v_lshlrev_b32 v30, 4, v30"); A("v_mov_b32 v31, 0xffff"); A("v_lshlrev_b32 v30, v30, v31")
    A(f"v_bfe_u32 v29, v0, 1, 2")
    for j in range(4):
        A(f"v_cmp_eq_u32 vcc, {j}, v29"); A(f"v_mov_b32 v{ACC+2*j}, 0"); A(f"v_mov_b32 v{ACC+2*j+1}, 0"); A(f"v_cndmask_b32 v{VMASK+j}, 0, v30, vcc")
    A(f"v_mov_b32 v{VL}, 0"); A(f"v_mov_b32 v{VM}, 0xff800000")
    A(f"s_mov_b32 s49, {CEXP:#x}")
    cons = {"c": 0}
    def advance(i):
        while True:
            j = cur["issued"]
            if j >= n or j > i + sdep(j): break
            assert j - slots < cons["c"], (j, cons)
            wait_for(("d", j - sdep(j)))
            load1()
        wait_for(("d", i))
    for i in range(depth):
        wait_for(("d", i))
        if i == 0: st(2)
        load1()
    wait_for(("q", 1))
    def diagop(d, dst, c):
        if c == 0: A(f"v_mov_b32_dpp v{dst}, v{d} quad_perm:[0,0,0,0] row_mask:0xf bank_mask:0xf")
        else: A(f"v_add_f32_dpp v{dst}, v{d+c}, v{dst} quad_perm:[{c},{c},{c},{c}] row_mask:0xf bank_mask:0xf")
    def chain_ops(h):
        for t in range(nstep):
            k = h - (2 * t + 3)
            if 0 <= k < 4: diagop(VD + 4 * (t % 4), VS + t, k)
            if k == 4 and t % 2 == 1: A(f"v_max3_f32 v{VM}, v{VS+t-1}, v{VS+t}, v{VM}")
    C("K phase: per step 4 keys; D[(key,c)][(head,c')] partial dot products, diagonal c==c' summed with DPP")
    for s in range(nstep):
        d = VD + 4 * (s % 4)
        for hf in range(2):
            i = 2 * s + hf
            mark = len(L)
            advance(i)
            r = VR + (i % slots) * 4
            c = "0" if hf == 0 else f"v[{d}:{d+3}]"
            A(f"v_mfma_f32_16x16x32_bf16 v[{d}:{d+3}], v[{r}:{r+3}], v[{VQ+4*hf}:{VQ+4*hf+3}], {c}")
            cons["c"] = i + 1
            if len(L) - mark < 3 or i <= 5: A("s_nop 3")
            chain_ops(i)
    st(3)
    for h in range(2 * nstep, 2 * nstep + 6):
        A("s_nop 2" if h < 2 * nstep + 2 else "s_nop 1")
        chain_ops(h)
    def xrow(reg, op):
        A(f"v_mov_b32 v28, v{reg}"); A("s_nop 1"); A(f"v_permlane32_swap_b32 v{reg}, v28"); A("s_nop 1"); A(f"{op} v{reg}, v{reg}, v28")
        A(f"v_mov_b32 v28, v{reg}"); A("s_nop 1"); A(f"v_permlane16_swap_b32 v{reg}, v28"); A("s_nop 1"); A(f"{op} v{reg}, v{reg}, v28")
    C("wave max per head")
    xrow(VM, "v_max_f32")
    def mkP2(t):
        a, b = VS + t, VS + t + 1
        A(f"v_sub_f32 v28, v{a}, v{VM}"); A(f"v_sub_f32 v29, v{b}, v{VM}")
        A("v_mul_f32 v28, s49, v28"); A("v_mul_f32 v29, s49, v29")
        A("v_exp_f32 v28, v28"); A("v_exp_f32 v29, v29")
        A(f"v_cvt_pk_bf16_f32 v{a}, v28, v28"); A(f"v_add_f32 v{VL}, v{VL}, v28")
        A(f"v_cvt_pk_bf16_f32 v{b}, v29, v29"); A(f"v_add_f32 v{VL}, v{VL}, v29")
    def mkA(t):
        a = VA + 4 * (t % 2)
        for j in range(4): A(f"v_and_b32 v{a+j}, v{VS+t}, v{VMASK+j}")
    C("V phase: A[(head,e)][(key,e')] = P[head][key] * delta(e,e'), B = V rows as loaded")
    mkP2(0); mkA(0); A("s_nop 1")
    for k in range(nstep):
        a = VA + 4 * (k % 2)
        for hf in range(2):
            i = nld + 2 * k + hf
            advance(i)
            r = VR + (i % slots) * 4
            A(f"v_mfma_f32_16x16x32_bf16 v[{ACC+4*hf}:{ACC+4*hf+3}], v[{a}:{a+3}], v[{r}:{r+3}], v[{ACC+4*hf}:{ACC+4*hf+3}]")
            cons["c"] = i + 1
            if hf == 0 and k + 1 < nstep: mkA(k + 1)
            if hf == 1 and 2 * k + 2 < nstep: mkP2(2 * k + 2)
            if hf == 1 and 2 * k + 2 == nstep:
                xrow(VL, "v_add_f32")
                A(f"ds_write2_b32 v{VLM}, v{VM}, v{VL} offset0:0 offset1:1")
                if t3: A("v_mov_b32 v30, 0"); A("v_mov_b32 v31, 1")
            if hf == 1 and k == nstep - 1 - xb:
                A("s_waitcnt lgkmcnt(0)"); A("s_barrier")
    st(4)
    A("s_nop 5")
    A(f"ds_write_b128 v{VLA}, v[{ACC}:{ACC+3}] offset:{LACC}")
    A("s_nop 0")
    A(f"ds_write_b128 v{VLA}, v[{ACC+4}:{ACC+7}] offset:{512+LACC}")
    if t3: A("s_mov_b64 exec, 1"); A("ds_add_u32 v30, v31 offset:64")
    A("s_waitcnt lgkmcnt(0)"); A("s_barrier")
    if stamp:
        A("s_mov_b64 exec, -1")
        st(5); st(6); st(7)
        A(f"s_load_dwordx2 s[{SX}:{SX+1}], s[0:1], 64")
        A("v_lshrrev_b32 v31, 6, v0"); A("s_nop 0"); A("v_readfirstlane_b32 s3, v31")
        A("s_branch L_fin")
    else:
        A("s_endpgm")
    A(".p2align 6")
    A("L_helper:")
    SY, SZ, SO = 32, 36, 40
    A(f"s_load_dwordx2 s[{SX}:{SX+1}], s[0:1], 64")
    A("s_load_dwordx2 s[52:53], s[0:1], 56")
    A(f"s_load_dwordx2 s[{SY}:{SY+1}], s[0:1], 24")
    A(f"s_load_dwordx2 s[{SZ}:{SZ+1}], s[0:1], 32")
    A(f"s_load_dwordx2 s[44:45], s[0:1], 40")
    A(f"s_load_dwordx2 s[{SO}:{SO+1}], s[0:1], 48")
    A("v_and_b32 v1, 63, v0")
    A("v_lshlrev_b32 v4, 4, v1")
    for r in range(4): A(f"v_mov_b32 v{12+r}, -1")
    A(f"s_mov_b32 s{SX+2}, {2*REGB:#x}"); A(f"s_mov_b32 s{SX+3}, 0x20000")
    A("s_lshl_b32 s50, s2, 12")
    A("s_lshr_b32 s4, s47, 21")
    A("s_lshr_b32 s27, s4, 4"); A("s_lshl_b32 s27, s27, 2")
    A("s_lshl_b32 s7, s4, 10"); A("s_lshl_b32 s26, s4, 9")
    A("v_and_b32 v5, 0x1f0, v4")
    for d_, nb in ((SQ, 65536), (SY, 32768), (SZ, 32768), (SO, 65536)):
        A(f"s_mov_b32 s{d_+2}, {nb}"); A(f"s_mov_b32 s{d_+3}, 0x20000")
    C("d_debug[pair]: bits 19:0 = four 5-bit fields (16|xcc id), bits 22:20 = arrival ticket, bits 26:24 = done count")
    A("s_getreg_b32 s8, hwreg(HW_REG_XCC_ID, 0, 4)"); A("s_or_b32 s8, s8, 16")
    A(f"s_bfe_u32 s9, s2, {0x10000 | mbit[0]:#x}"); A(f"s_bfe_u32 s10, s2, {0x10000 | mbit[1]:#x}")
    A("s_lshl_b32 s10, s10, 1"); A("s_or_b32 s9, s9, s10")
    A("s_mul_i32 s10, s9, 5"); A("s_lshl_b32 s11, s8, s10"); A("s_or_b32 s10, s11, 0x100000")
    A("s_mul_i32 s8, s8, 0x8421")
    A("s_lshl_b32 s51, s4, 2"); A("v_mov_b32 v8, s51"); A("v_mov_b32 v9, s10")
    A("s_waitcnt lgkmcnt(0)")
    st(1)
    A("s_load_dword s27, s[44:45], s27")
    C("mark own mailbox empty (all ones)")
    A(f"buffer_store_dwordx4 v[12:15], v4, s[{SX}:{SX+3}], s50 offen")
    A(f"buffer_store_dwordx4 v[12:15], v4, s[{SX}:{SX+3}], s50 offen offset:1024")
    A("s_mov_b64 exec, 0xff")
    A(f"buffer_store_dwordx4 v[12:15], v4, s[{SX}:{SX+3}], s50 offen offset:2048")
    A("s_mov_b64 exec, -1")
    A("v_lshlrev_b32 v2, 5, v1")
    A(f"s_mov_b32 s49, {CEXP:#x}")
    A("v_lshrrev_b32 v7, 5, v1"); A("v_lshlrev_b32 v7, 3, v7")
    VT8 = 32
    A("v_mov_b32 v6, 0xff800000")
    for e in range(8): A(f"v_mov_b32 v{VT8+e}, 0")
    A("s_cmp_lg_u32 s9, 0"); A("s_cbranch_scc1 L_notree")
    C("tree token (one workgroup per pair): score + mask bias, value row")
    A(f"buffer_load_dwordx4 v[16:19], v4, s[{SQ}:{SQ+3}], s7 offen")
    A(f"buffer_load_dwordx4 v[20:23], v5, s[{SY}:{SY+3}], s26 offen")
    A(f"buffer_load_dwordx4 v[24:27], v5, s[{SZ}:{SZ+3}], s26 offen")
    A("s_waitcnt vmcnt(0) lgkmcnt(0)")
    A("v_mov_b32 v6, 0")
    for j in range(4):
        A(f"v_lshlrev_b32 v28, 16, v{16+j}"); A(f"v_lshlrev_b32 v29, 16, v{20+j}"); A("v_fmac_f32 v6, v28, v29")
        A(f"v_and_b32 v28, 0xffff0000, v{16+j}"); A(f"v_and_b32 v29, 0xffff0000, v{20+j}"); A("v_fmac_f32 v6, v28, v29")
    for s_ in (8, 4, 2, 1):
        A("s_nop 1"); A(f"v_add_f32_dpp v6, v6, v6 row_ror:{s_} row_mask:0xf bank_mask:0xf")
    A("v_mov_b32 v28, v6"); A("s_nop 1"); A("v_permlane16_swap_b32 v6, v28"); A("s_nop 1"); A("v_add_f32 v6, v6, v28")
    A("s_bitcmp1_b32 s4, 3")
    A("s_cselect_b32 s51, 0, 16"); A("s_lshl_b32 s27, s27, s51"); A("s_and_b32 s27, s27, 0xffff0000")
    A("v_mov_b32 v29, s27"); A("v_sub_f32 v29, 1.0, v29")
    A(f"v_mul_f32 v29, {f2u(-1.6e10):#x}, v29")
    A("v_add_f32 v6, v6, v29")
    for j in range(4):
        A(f"v_lshlrev_b32 v{VT8+2*j}, 16, v{24+j}"); A(f"v_and_b32 v{VT8+2*j+1}, 0xffff0000, v{24+j}")
    A("L_notree:")
    A("s_mov_b32 s56, -2")
    if t3: A("v_mov_b32 v3, 0"); A("ds_write_b32 v3, v3 offset:64")
    for j, mk_ in enumerate((mate[0], mate[1], mate[0] | mate[1])):
        A(f"s_xor_b32 s{57+j}, s50, {mk_ << 12:#x}")
    A("s_mov_b32 s5, 0x100000")
    A("s_waitcnt vmcnt(0) lgkmcnt(0)")
    if sat:
        A("s_lshl_b32 s6, s4, 2")
    if sat == 1:
        A("s_mov_b32 s10, s11")
        A("s_atomic_add s10, s[52:53], s6 glc")
        A("s_waitcnt lgkmcnt(0)")
        A("s_mov_b32 s10, 0x100000")
    st(2)
    A("s_barrier")
    st(3)
    C("near the end of the stream: take a ticket; the last of the four workgroups combines")
    MW = 40
    if not sat:
        A("s_mov_b64 exec, 1")
        A("global_atomic_add v9, v8, v9, s[52:53] sc0")
        A("s_mov_b64 exec, -1")
    for w in range(4): A(f"ds_read_b64 v[{MW+2*w}:{MW+2*w+1}], v7 offset:{16*w}")
    A("s_waitcnt lgkmcnt(0)")
    if sat: A("s_atomic_add s10, s[52:53], s6 glc")
    A(f"v_max3_f32 v10, v{MW}, v{MW+2}, v{MW+4}"); A(f"v_max3_f32 v10, v10, v{MW+6}, v6")
    for w in range(4): A(f"v_sub_f32 v{48+w}, v{MW+2*w}, v10")
    A("v_sub_f32 v52, v6, v10")
    for w in range(5): A(f"v_mul_f32 v{48+w}, s49, v{48+w}")
    for w in range(5): A(f"v_exp_f32 v{48+w}, v{48+w}")
    A("s_nop 0")
    A(f"v_fma_f32 v11, v48, v{MW+1}, v52")
    for w in range(1, 4): A(f"v_fmac_f32 v11, v{48+w}, v{MW+2*w+1}")
    O = 12
    A("v_min_u32 v10, s56, v10"); A("v_min_u32 v11, s56, v11")
    A("s_mov_b32 exec_lo, 1"); A("s_mov_b32 exec_hi, 1")
    A(f"buffer_store_dwordx2 v[10:11], v7, s[{SX}:{SX+3}], s50 offen offset:2048")
    A("s_mov_b64 exec, -1")
    for e in range(8): A(f"v_mul_f32 v{O+e}, v52, v{VT8+e}")
    if sat:
        A("s_waitcnt lgkmcnt(0)"); A("s_mov_b32 s51, s10")
    else:
        A("s_waitcnt vmcnt(0)")
        A("v_readfirstlane_b32 s51, v9")
    st(4)
    A("s_and_b32 s10, s51, 0xfffff"); A("s_or_b32 s10, s10, s11")
    A("s_bfe_u32 s51, s51, 0x30014")
    A("s_cmp_eq_u32 s51, 3"); A("s_cbranch_scc1 L_last")
    RD = 64
    def ownmerge():
        for w in range(4):
            A(f"ds_read_b128 v[{RD+8*w}:{RD+8*w+3}], v2 offset:{LACC+2048*w}")
            A(f"ds_read_b128 v[{RD+8*w+4}:{RD+8*w+7}], v2 offset:{LACC+2048*w+16}")
        for w in range(4):
            A(f"s_waitcnt lgkmcnt({6-2*w})")
            for e in range(8): A(f"v_fmac_f32 v{O+e}, v{48+w}, v{RD+8*w+e}")
    C("producer")
    A("s_barrier")
    st(5)
    ownmerge()
    for e in range(4): A(f"v_min_u32 v{O+e}, s56, v{O+e}")
    A(f"buffer_store_dwordx4 v[{O}:{O+3}], v4, s[{SX}:{SX+3}], s50 offen")
    for e in range(4, 8): A(f"v_min_u32 v{O+e}, s56, v{O+e}")
    A(f"buffer_store_dwordx4 v[{O+4}:{O+7}], v4, s[{SX}:{SX+3}], s50 offen offset:1024")
    st(6)
    if sat == 2:
        A("s_mov_b32 s10, 0"); A("s_atomic_add s10, s[52:53], s6 glc"); A("s_waitcnt lgkmcnt(0)")
        A("s_and_b32 s10, s10, 0xfffff")
    elif sat == 0:
        A("global_load_dword v28, v8, s[52:53] sc1")
        A("s_waitcnt vmcnt(0)")
        A("v_readfirstlane_b32 s10, v28")
        A("s_and_b32 s10, s10, 0xfffff")
    A("s_cmp_eq_u32 s10, s8"); A("s_cbranch_scc1 " + ("L_pfin" if stamp else "L_done"))
    C("not known to share one XCD: publish write-through, then count as done")
    A(f"s_add_u32 s50, s50, {REGB:#x}")
    A(f"buffer_store_dwordx4 v[{O}:{O+3}], v4, s[{SX}:{SX+3}], s50 offen sc1")
    A(f"buffer_store_dwordx4 v[{O+4}:{O+7}], v4, s[{SX}:{SX+3}], s50 offen offset:1024 sc1")
    A("s_mov_b32 exec_lo, 1"); A("s_mov_b32 exec_hi, 1")
    A(f"buffer_store_dwordx2 v[10:11], v7, s[{SX}:{SX+3}], s50 offen offset:2048 sc1")
    A("s_mov_b64 exec, 1")
    A("v_mov_b32 v9, 0x1000000")
    A("s_waitcnt vmcnt(0)")
    A("global_atomic_add v8, v9, s[52:53]")
    if stamp:
        A("s_mov_b64 exec, -1")
        A("L_pfin:"); A("s_waitcnt vmcnt(0)"); st(7); A("s_branch L_hfin")
    else: A("s_endpgm")
    PM = 96
    def pollO():
        for j in range(3):
            b = PM + 12 * j
            A(f"buffer_load_dwordx4 v[{b}:{b+3}], v4, s[{SX}:{SX+3}], s{57+j} offen {ldsc}")
            A(f"buffer_load_dwordx4 v[{b+4}:{b+7}], v4, s[{SX}:{SX+3}], s{57+j} offen offset:1024 {ldsc}")
    def checkO():
        for j in range(3):
            b = PM + 12 * j
            A(f"s_waitcnt vmcnt({4-2*j})")
            for e in range(0, 8, 2):
                if j == 0 and e == 0: A(f"v_max_u32 v28, v{b}, v{b+1}")
                else: A(f"v_max3_u32 v28, v{b+e}, v{b+e+1}, v28")
        A("v_cmp_eq_u32 vcc, -1, v28")
    def accO():
        for j in range(3):
            for e in range(8): A(f"v_fmac_f32 v{O+e}, v{53+j}, v{PM+12*j+e}")
    A("L_last:")
    A("s_cmp_eq_u32 s10, s8"); A("s_cbranch_scc1 L_comb")
    C("different XCDs: wait for the three done marks, then read the write-through copies")
    A("L_wait:")
    A("global_load_dword v28, v8, s[52:53] sc1")
    A("s_waitcnt vmcnt(0)")
    A("v_readfirstlane_b32 s51, v28")
    A("s_sub_u32 s5, s5, 1"); A("s_cbranch_scc1 L_wend")
    A("s_bfe_u32 s51, s51, 0x30018")
    A("s_cmp_lg_u32 s51, 3"); A("s_cbranch_scc1 L_wait")
    A("L_wend:")
    for j in range(3): A(f"s_add_u32 s{57+j}, s{57+j}, {REGB:#x}")
    A("s_mov_b32 s5, 0x100000")
    A("L_comb:")
    for j in range(3):
        b = PM + 12 * j
        A(f"buffer_load_dwordx2 v[{b+8}:{b+9}], v7, s[{SX}:{SX+3}], s{57+j} offen offset:2048 {ldsc}")
    pollO()
    A("s_waitcnt vmcnt(6)")
    A(f"v_max3_u32 v28, v{PM+8}, v{PM+9}, v{PM+20}"); A(f"v_max3_u32 v28, v{PM+21}, v{PM+32}, v28"); A(f"v_max_u32 v28, v{PM+33}, v28")
    A("v_cmp_eq_u32 vcc, -1, v28")
    A("s_sub_u32 s5, s5, 1")
    A("s_cbranch_scc1 L_mlok")
    A("s_cbranch_vccnz L_comb")
    A("L_mlok:")
    A(f"v_max3_f32 v28, v10, v{PM+8}, v{PM+20}"); A(f"v_max_f32 v28, v28, v{PM+32}")
    A("v_sub_f32 v52, v10, v28")
    for j in range(3): A(f"v_sub_f32 v{53+j}, v{PM+12*j+8}, v28")
    for j in range(4): A(f"v_mul_f32 v{52+j}, s49, v{52+j}")
    for j in range(4): A(f"v_exp_f32 v{52+j}, v{52+j}")
    A("v_mul_f32 v29, v52, v11")
    for j in range(3): A(f"v_fmac_f32 v29, v{53+j}, v{PM+12*j+9}")
    A("v_rcp_f32 v29, v29"); A("s_nop 0")
    for j in range(4): A(f"v_mul_f32 v{52+j}, v{52+j}, v29")
    for w in range(4): A(f"v_mul_f32 v{48+w}, v{48+w}, v52")
    for e in range(8): A(f"v_mul_f32 v{O+e}, v52, v{O+e}")
    A("s_mov_b32 s5, 0x100000")
    checkO()
    A("s_cbranch_vccnz L_late")
    A("L_early:")
    st(5)
    accO()
    A("s_barrier")
    st(6)
    ownmerge()
    A("s_branch L_out")
    A("L_late:")
    pollO()
    if t3:
        A("ds_read_b32 v29, v3 offset:64")
        A("s_sub_u32 s5, s5, 1")
        A("s_cbranch_scc1 L_giveup")
        A("s_waitcnt lgkmcnt(0)")
        A("v_cmp_eq_u32 vcc, 4, v29")
        A("s_cbranch_vccnz L_own")
        checkO()
        A("s_cbranch_vccnz L_late")
        A("L_giveup:")
        A("s_waitcnt vmcnt(0)")
        A("s_branch L_early")
        A("L_own:")
    else:
        A("s_barrier")
    st(6)
    ownmerge()
    A("L_poll:")
    checkO()
    A("s_cbranch_vccz L_got")
    pollO()
    A("s_sub_u32 s5, s5, 1")
    A("s_cbranch_scc0 L_poll")
    A("s_waitcnt vmcnt(0)")
    A("L_got:")
    st(5)
    accO()
    A("L_out:")
    for e in range(4): A(f"v_cvt_pk_bf16_f32 v{24+e}, v{O+2*e}, v{O+2*e+1}")
    A(f"buffer_store_dwordx4 v[24:27], v4, s[{SO}:{SO+3}], s7 offen")
    if stamp:
        A("s_waitcnt vmcnt(0)"); st(7)
        A("L_hfin:")
        A("s_mov_b32 s3, 4")
        A("L_fin:")
        A("s_waitcnt lgkmcnt(0)")
        A(f"s_mov_b32 s{SX+2}, 0x20000000"); A(f"s_mov_b32 s{SX+3}, 0x20000")
        A(f"s_mul_i32 s51, s2, 5"); A("s_add_u32 s51, s51, s3"); A("s_lshl_b32 s51, s51, 5"); A("s_add_u32 s51, s51, 0x1000000")
        for i in range(8): A(f"v_mov_b32 v{32+i}, s{60+2*i}")
        A("v_mov_b32 v31, 0"); A("s_mov_b64 exec, 1")
        A(f"buffer_store_dwordx4 v[32:35], v31, s[{SX}:{SX+3}], s51 offen")
        A(f"buffer_store_dwordx4 v[36:39], v31, s[{SX}:{SX+3}], s51 offen offset:16")
    A("L_done:"); A("s_endpgm")
    if sel >= 0:
        per = 20
        A(".globl diag_kernel"); A(".p2align 8"); A(".type diag_kernel,@function"); A("diag_kernel:")
        A("s_cmp_ge_u32 s2, 1"); A("s_cbranch_scc1 L_done3")
        A("s_load_dwordx2 s[28:29], s[0:1], 64")
        A("v_lshlrev_b32 v1, 5, v0")
        A("s_mov_b32 s30, 0x20000000"); A("s_mov_b32 s31, 0x20000")
        A("s_waitcnt lgkmcnt(0)")
        A("s_mov_b32 s51, 0x1000000")
        for i in range(per):
            A(f"buffer_load_dword v{4+2*i}, v1, s[28:31], s51 offen")
            A(f"buffer_load_dword v{5+2*i}, v1, s[28:31], s51 offen offset:{4*sel}")
            A("s_add_u32 s51, s51, 2048")
        A("s_waitcnt vmcnt(0)")
        for i in range(1, per):
            A(f"v_min_u32 v4, v4, v{4+2*i}"); A(f"v_max_u32 v5, v5, v{5+2*i}")
        A("s_nop 1")
        A("v_readlane_b32 s4, v4, 0"); A("v_readlane_b32 s5, v5, 0")
        for l in range(1, 64):
            A(f"v_readlane_b32 s6, v4, {l}"); A(f"v_readlane_b32 s7, v5, {l}"); A("s_min_u32 s4, s4, s6"); A(f"s_max_u32 s5, s5, s7")
        A("s_sub_u32 s5, s5, s4"); A(f"s_mul_i32 s5, s5, {mult}")
        A("s_min_u32 s5, s5, 100000")
        A("s_memrealtime s[8:9]"); A("s_waitcnt lgkmcnt(0)")
        A("L_spin:"); A("s_memrealtime s[10:11]"); A("s_waitcnt lgkmcnt(0)"); A("s_sub_u32 s6, s10, s8"); A("s_cmp_lt_u32 s6, s5"); A("s_cbranch_scc1 L_spin")
        A("L_done3:"); A("s_endpgm")
    A('.section .rodata,"a"'); A(".p2align 6")
    need = max(nv, PM + 36)
    accum = (need + 3) // 4 * 4
    def kd(name, nvg):
        A(f".amdhsa_kernel {name}")
        A(f"  .amdhsa_next_free_vgpr {nvg}"); A("  .amdhsa_next_free_sgpr 80"); A(f"  .amdhsa_accum_offset {nvg}")
        A("  .amdhsa_group_segment_fixed_size 0"); A("  .amdhsa_kernarg_size 72"); A("  .amdhsa_user_sgpr_count 2")
        A("  .amdhsa_user_sgpr_kernarg_segment_ptr 1"); A("  .amdhsa_system_sgpr_workgroup_id_x 1")
        A("  .amdhsa_float_denorm_mode_32 3")
        A(".end_amdhsa_kernel")
    kd(KN, accum)
    if sel >= 0: A(".p2align 6"); kd("diag_kernel", 64)
    return "\n".join(L) + "\n"
if __name__ == "__main__":
    name = sys.argv[1]
    kw = {}
    for x in sys.argv[2:]:
        k, v = x.split("=")
        if k not in ('prof', 'wg'):
            try: v = int(v)
            except: pass
        if k.endswith("flags") or k.endswith("sc"): v = v.replace("+", " ").replace("none", "")
        kw[k] = v
    open(name, "w").write(gen(**kw))
```

```python
import sys, struct, math
KN = "standalone__tree_speculative_verify_tree_attention_over_candidate_token_tree__decode_kernel"
HEADER = open("standalone__tree_speculative_verify_tree_attention_over_candidate_token_tree__decode.s.ref").read().split("; Override launch geometry")[0]
def f2u(x): return struct.unpack("<I", struct.pack("<f", x))[0]
CEXP = f2u(0.0625 * 1.4426950408889634)

def gen(depth=5, slots=16, flags="nt", lds=90000, stamp=0, xb=7, dend=8, nend=12,
        wg="22,23,26,14,20,21,24,25", sel=-1, mult=8, ldsc="sc1", comments=1, sat=2, steps="15,13,16,17,18,19", fb=1, cp=200, lag=6, dmax=7, r0=64, a0=7, r1=112, a1=12, xr="", pab=0, pk=0, otouch=0, noearly=0):
    nwg = 256; nstep = 64; nld = 128; n = 256
    wgb = [int(x) for x in wg.split(",")]
    holes = [b for b in wgb if b < 21]
    stepb = [b for b in range(13, 21) if b not in holes]
    if steps:
        st_ = [int(x) for x in steps.split(",")]
        assert sorted(st_) == stepb, (st_, stepb)
        stepb = st_
    assert len(stepb) == 6 and sorted(wgb) == sorted(holes + list(range(21, 27)))
    xl = [tuple(int(y) for y in x.split(":")) for x in xr.split(",")] if xr else []
    assert all(b in stepb for _, b in xl)
    mbit = [wgb.index(h) for h in holes]
    mate = [1 << b for b in mbit]
    def soff(s_): return sum(((s_ >> i) & 1) << b for i, b in enumerate(stepb))
    L = []; A = L.append
    def C(t):
        if comments: A("; " + t)
    LACC = 128
    FLAGS = 0x200000
    REGB = 0x100000
    ldsb = max(lds, LACC + 8192)
    A(HEADER.rstrip())
    if sel >= 0:
        A(f"; @launch kernel={KN} grid=({nwg},1,1) block=(320,1,1) lds={ldsb}")
        A(f"; @launch kernel=diag_kernel grid=(1,1,1) block=(64,1,1) lds=0")
    else:
        A(f"; @launch grid=({nwg},1,1) block=(320,1,1) lds={ldsb}")
    A('.amdgcn_target "amdgcn-amd-amdhsa--gfx950"')
    A(".text"); A(f".globl {KN}"); A(".p2align 8"); A(f".type {KN},@function"); A(f"{KN}:")
    VOK, VOV, VOQ = 1, 2, 3
    VMASK = 4; VL, VM = 8, 9; VLA, VLM = 10, 11; ACC = 12; VA = 20; VQ = 32; VD = 40; VR = 56
    VS = VR + 4 * slots
    nv = VS + nstep
    assert nv <= 256
    SK, SV, SQ, SX = 12, 16, 20, 28
    def st(i):
        if stamp: A(f"s_memrealtime s[{60+2*i}:{61+2*i}]")
    def basecalc(dst, tmp):
        groups = []; i = 0
        while i < 8:
            j = i
            while j + 1 < 8 and wgb[j + 1] == wgb[j] + 1: j += 1
            groups.append((i, j)); i = j + 1
        for n_, (i, j) in enumerate(groups):
            m = ((1 << (j - i + 1)) - 1) << i
            r = dst if n_ == 0 else tmp
            A(f"s_and_b32 {r}, s2, {m:#x}"); A(f"s_lshl_b32 {r}, {r}, {wgb[i]-i}")
            if n_: A(f"s_or_b32 {dst}, {dst}, {tmp}")
        for i, b in xl:
            A(f"s_and_b32 {tmp}, s2, {1 << i:#x}"); A(f"s_lshl_b32 {tmp}, {tmp}, {b-i}"); A(f"s_xor_b32 {dst}, {dst}, {tmp}")
    st(0)
    C("waves 0-3 stream K then V (256 keys each); wave 4 merges partial results")
    A(f"s_load_dwordx2 s[{SK}:{SK+1}], s[0:1], 8")
    A(f"s_load_dwordx2 s[{SQ}:{SQ+1}], s[0:1], 0")
    A(f"s_load_dwordx2 s[{SV}:{SV+1}], s[0:1], 16")
    A("v_lshrrev_b32 v31, 6, v0")
    A("v_cmp_lt_u32 vcc, 3, v31")
    A(f"s_cmpk_ge_u32 s2, {nwg}"); A("s_cbranch_scc1 L_done")
    C("s47 = byte offset of this workgroup's slice inside k_cache / v_cache (bits 26:21 = (b,hkv) pair)")
    basecalc("s47", "s46")
    A("s_cbranch_vccnz L_helper")
    A("v_and_b32 v28, 3, v0")
    A("v_bfe_u32 v29, v0, 4, 2")
    A("v_lshl_add_u32 v28, v29, 2, v28")
    A("v_lshlrev_b32 v28, 4, v28")
    A("v_bfe_u32 v30, v0, 2, 2")
    A("v_lshl_add_u32 v30, v31, 2, v30")
    A(f"v_lshl_add_u32 v{VOK}, v30, 9, v28")
    A(f"s_brev_b32 s{SK+2}, 16"); A(f"s_mov_b32 s{SK+3}, 0x20000")
    cur = {"issued": 0}; order = []
    def load1():
        i = cur["issued"]; assert i < n
        cur["issued"] = i + 1
        tn = "k" if i < nld else "v"
        s, hf = divmod(i % nld, 2)
        so = "s47" if s == 0 else "s48"
        if hf == 0 and s > 0: A(f"s_xor_b32 s48, s47, {soff(s):#x}")
        r = VR + (i % slots) * 4
        if tn == "k": A(f"buffer_load_dwordx4 v[{r}:{r+3}], v{VOK}, s[{SK}:{SK+3}], {so} offen offset:{256*hf} {flags}")
        else: A(f"buffer_load_dwordx4 v[{r}:{r+3}], v{VOV}, s[{SV}:{SV+3}], {so} offen offset:{256*hf} {flags}")
        order.append(("d", i))
    done = {"pos": -1}
    def isst(op): return op == ("f", 1)
    def emit_wait(N):
        A(f"s_waitcnt vmcnt({N})")
        lds_ = [p for p, op in enumerate(order) if not isst(op)]
        if len(lds_) > N: done["pos"] = max(done["pos"], lds_[len(lds_) - 1 - N])
    def wait_for(op):
        p = order.index(op)
        if p <= done["pos"]: return
        emit_wait(sum(1 for o in order[p + 1:] if not isst(o)))
    def sdep(j):
        if dend and j >= n - nend: return dend
        return depth
    A("s_waitcnt lgkmcnt(0)")
    st(1)
    for i in range(depth): load1()
    A("v_bfe_u32 v30, v0, 3, 1")
    A(f"v_lshl_add_u32 v{VOQ}, v30, 9, v28")
    A("s_lshr_b32 s7, s47, 21"); A("s_lshl_b32 s7, s7, 10")
    A(f"s_mov_b32 s{SQ+2}, 0x10000"); A(f"s_mov_b32 s{SQ+3}, 0x20000")
    for j in range(2):
        A(f"buffer_load_dwordx4 v[{VQ+4*j}:{VQ+4*j+3}], v{VOQ}, s[{SQ}:{SQ+3}], s7 offen offset:{256*j}")
        order.append(("q", j))
    A(f"s_brev_b32 s{SV+2}, 16"); A(f"s_mov_b32 s{SV+3}, 0x20000")
    if fb:
        A(f"s_load_dwordx2 s[{SX}:{SX+1}], s[0:1], 64")
        A(f"s_mov_b32 s{SX+2}, {FLAGS+0x8000:#x}"); A(f"s_mov_b32 s{SX+3}, 0x20000")
        A("s_and_b32 s50, s2, 7"); A("s_lshl_b32 s50, s50, 12"); A(f"s_add_u32 s50, s50, {FLAGS:#x}")
        A("s_lshr_b32 s51, s2, 3"); A("s_lshl_b32 s51, s51, 2")
    A("v_and_b32 v30, 15, v0")
    A("v_lshl_add_u32 v28, v31, 2, v29")
    A("v_lshlrev_b32 v28, 9, v28")
    A(f"v_lshl_add_u32 v{VOV}, v30, 4, v28")
    A(f"v_lshlrev_b32 v{VLA}, 5, v30")
    A("v_and_b32 v28, 1, v29"); A(f"v_lshl_add_u32 v{VLA}, v28, 4, v{VLA}")
    A("v_lshrrev_b32 v28, 5, v0"); A(f"v_lshl_add_u32 v{VLA}, v28, 10, v{VLA}")
    A("v_bfe_u32 v28, v0, 3, 1"); A("v_lshl_add_u32 v28, v31, 1, v28"); A(f"v_lshlrev_b32 v{VLM}, 3, v28")
    A(f"v_and_b32 v30, 1, v0"); A("v_lshlrev_b32 v30, 4, v30"); A("v_mov_b32 v31, 0xffff"); A("v_lshlrev_b32 v30, v30, v31")
    A(f"v_bfe_u32 v29, v0, 1, 2")
    for j in range(4):
        A(f"v_cmp_eq_u32 vcc, {j}, v29"); A(f"v_mov_b32 v{ACC+2*j}, 0"); A(f"v_mov_b32 v{ACC+2*j+1}, 0"); A(f"v_cndmask_b32 v{VMASK+j}, 0, v30, vcc")
    A(f"v_mov_b32 v{VL}, 0"); A(f"v_mov_b32 v{VM}, 0xff800000")
    A(f"s_mov_b32 s49, {CEXP:#x}")
    cons = {"c": 0}
    st0 = cp + lag + 1
    def boostable(j): return fb and st0 <= j < n - nend
    def advance(i):
        while True:
            j = cur["issued"]
            mid = fb and cp < j < st0
            ahead = dmax if boostable(j) else (depth + 1 if mid else sdep(j))
            if j >= n or j > i + ahead: break
            assert j - slots < cons["c"], (j, cons)
            if boostable(j):
                A(f"s_cmp_gt_u32 s54, {j - st0}"); A(f"s_cbranch_scc1 L_b{j}")
                A(f"s_waitcnt vmcnt({len(order) - 1 - order.index(('d', j - depth))})")
                A(f"L_b{j}:")
            if mid: emit_wait(len(order) - 1 - order.index(("d", j - depth)))
            wait_for(("d", j - ahead))
            load1()
            if fb and j == cp:
                C("progress check: how many waves of this group passed this point earlier?")
                A(f"buffer_load_ushort v30, v{VOQ}, s[{SX}:{SX+3}], s50 offen nt"); order.append(("f", 0))
                A("s_mov_b64 exec, 1")
                A(f"buffer_store_byte v{VQ+1}, v{VQ}, s[{SX}:{SX+3}], s50 offen"); order.append(("f", 1))
                A("s_mov_b64 exec, -1")
            if fb and j == cp + lag:
                wait_for(("f", 0))
                A("v_cmp_lt_u32 vcc, 0xff, v30"); A("v_and_b32 v30, 0xff, v30"); A("s_bcnt1_i32_b64 s54, vcc")
                A("v_cmp_ne_u32 vcc, 0, v30"); A("s_nop 1"); A("s_bcnt1_i32_b64 s55, vcc"); A("s_add_u32 s54, s54, s55")
                if stamp: A("s_mov_b32 s72, s54")
                A(f"s_sub_i32 s55, s54, {r1}"); A("s_max_i32 s55, s55, 0"); A(f"s_mul_i32 s55, s55, {a1}")
                A(f"s_sub_i32 s54, s54, {r0}"); A("s_max_i32 s54, s54, 0"); A(f"s_mul_i32 s54, s54, {a0}")
                A("s_add_u32 s54, s54, s55"); A("s_lshr_b32 s54, s54, 4")
        wait_for(("d", i))
    for i in range(depth):
        wait_for(("d", i))
        if i == 0: st(2)
        load1()
    wait_for(("q", 1))
    def diagop(d, dst, c):
        if c == 0: A(f"v_mov_b32_dpp v{dst}, v{d} quad_perm:[0,0,0,0] row_mask:0xf bank_mask:0xf")
        else: A(f"v_add_f32_dpp v{dst}, v{d+c}, v{dst} quad_perm:[{c},{c},{c},{c}] row_mask:0xf bank_mask:0xf")
    def chain_ops(h):
        for t in range(nstep):
            k = h - (2 * t + 3)
            if 0 <= k < 4: diagop(VD + 4 * (t % 4), VS + t, k)
            if k == 4 and t % 2 == 1: A(f"v_max3_f32 v{VM}, v{VS+t-1}, v{VS+t}, v{VM}")
    C("K phase: per step 4 keys; D[(key,c)][(head,c')] partial dot products, diagonal c==c' summed with DPP")
    for s in range(nstep):
        d = VD + 4 * (s % 4)
        for hf in range(2):
            i = 2 * s + hf
            mark = len(L)
            advance(i)
            r = VR + (i % slots) * 4
            c = "0" if hf == 0 else f"v[{d}:{d+3}]"
            A(f"v_mfma_f32_16x16x32_bf16 v[{d}:{d+3}], v[{r}:{r+3}], v[{VQ+4*hf}:{VQ+4*hf+3}], {c}")
            cons["c"] = i + 1
            if len(L) - mark < 3 or i <= 5: A("s_nop 3")
            chain_ops(i)
    st(3)
    for h in range(2 * nstep, 2 * nstep + 6):
        A("s_nop 2" if h < 2 * nstep + 2 else "s_nop 1")
        chain_ops(h)
    def xrow(reg, op):
        A(f"v_mov_b32 v28, v{reg}"); A("s_nop 1"); A(f"v_permlane32_swap_b32 v{reg}, v28"); A("s_nop 1"); A(f"{op} v{reg}, v{reg}, v28")
        A(f"v_mov_b32 v28, v{reg}"); A("s_nop 1"); A(f"v_permlane16_swap_b32 v{reg}, v28"); A("s_nop 1"); A(f"{op} v{reg}, v{reg}, v28")
    C("wave max per head")
    xrow(VM, "v_max_f32")
    def mkP2(t):
        a, b = VS + t, VS + t + 1
        A(f"v_sub_f32 v28, v{a}, v{VM}"); A(f"v_sub_f32 v29, v{b}, v{VM}")
        A("v_mul_f32 v28, s49, v28"); A("v_mul_f32 v29, s49, v29")
        A("v_exp_f32 v28, v28"); A("v_exp_f32 v29, v29")
        A(f"v_cvt_pk_bf16_f32 v{a}, v28, v28"); A(f"v_add_f32 v{VL}, v{VL}, v28")
        A(f"v_cvt_pk_bf16_f32 v{b}, v29, v29"); A(f"v_add_f32 v{VL}, v{VL}, v29")
    def mkA(t):
        a = VA + 4 * (t % 2)
        for j in range(4): A(f"v_and_b32 v{a+j}, v{VS+t}, v{VMASK+j}")
    C("V phase: A[(head,e)][(key,e')] = P[head][key] * delta(e,e'), B = V rows as loaded")
    mkP2(0); mkA(0); A("s_nop 1")
    for k in range(nstep):
        a = VA + 4 * (k % 2)
        for hf in range(2):
            i = nld + 2 * k + hf
            advance(i)
            r = VR + (i % slots) * 4
            A(f"v_mfma_f32_16x16x32_bf16 v[{ACC+4*hf}:{ACC+4*hf+3}], v[{a}:{a+3}], v[{r}:{r+3}], v[{ACC+4*hf}:{ACC+4*hf+3}]")
            cons["c"] = i + 1
            if hf == 0 and k + 1 < nstep: mkA(k + 1)
            if hf == 1 and 2 * k + 2 < nstep: mkP2(2 * k + 2)
            if hf == 1 and 2 * k + 2 == nstep:
                xrow(VL, "v_add_f32")
                A(f"ds_write2_b32 v{VLM}, v{VM}, v{VL} offset0:0 offset1:1")
            if fb and hf == 0 and k == 2:
                assert cur["issued"] < cp
                A(f"v_and_b32 v{VOQ}, 63, v0"); A(f"v_lshlrev_b32 v{VOQ}, 1, v{VOQ}")
                A(f"v_lshrrev_b32 v{VQ}, 6, v0"); A(f"v_add_u32 v{VQ}, s51, v{VQ}"); A(f"v_mov_b32 v{VQ+1}, 1")
                A("s_waitcnt lgkmcnt(0)")
            if hf == 1 and k == nstep - 1 - xb:
                A("s_waitcnt lgkmcnt(0)"); A("s_barrier")
    st(4)
    A("s_nop 5")
    A(f"ds_write_b128 v{VLA}, v[{ACC}:{ACC+3}] offset:{LACC}")
    A("s_nop 0")
    A(f"ds_write_b128 v{VLA}, v[{ACC+4}:{ACC+7}] offset:{512+LACC}")
    A("s_waitcnt lgkmcnt(0)"); A("s_barrier")
    if stamp:
        A("s_mov_b64 exec, -1")
        st(5); st(7)
        if fb: A("s_mul_i32 s72, s72, 100"); A("s_add_u32 s72, s72, s60")
        else: st(6)
        A(f"s_load_dwordx2 s[{SX}:{SX+1}], s[0:1], 64")
        A("v_lshrrev_b32 v31, 6, v0"); A("s_nop 0"); A("v_readfirstlane_b32 s3, v31")
        A("s_branch L_fin")
    else:
        A("s_endpgm")
    A(".p2align 6")
    A("L_helper:")
    SY, SZ, SO = 32, 36, 40
    A(f"s_load_dwordx2 s[{SX}:{SX+1}], s[0:1], 64")
    A("s_load_dwordx2 s[52:53], s[0:1], 56")
    A(f"s_load_dwordx2 s[{SY}:{SY+1}], s[0:1], 24")
    A(f"s_load_dwordx2 s[{SZ}:{SZ+1}], s[0:1], 32")
    A(f"s_load_dwordx2 s[44:45], s[0:1], 40")
    A(f"s_load_dwordx2 s[{SO}:{SO+1}], s[0:1], 48")
    A("v_and_b32 v1, 63, v0")
    A("v_lshlrev_b32 v4, 4, v1")
    for r in range(4): A(f"v_mov_b32 v{12+r}, -1")
    A(f"s_mov_b32 s{SX+2}, {FLAGS+0x8000:#x}"); A(f"s_mov_b32 s{SX+3}, 0x20000")
    A("s_lshl_b32 s50, s2, 12")
    A("s_lshr_b32 s4, s47, 21")
    A("s_lshr_b32 s27, s4, 4"); A("s_lshl_b32 s27, s27, 2")
    A("s_lshl_b32 s7, s4, 10"); A("s_lshl_b32 s26, s4, 9")
    A("v_and_b32 v5, 0x1f0, v4")
    for d_, nb in ((SQ, 65536), (SY, 32768), (SZ, 32768), (SO, 65536)):
        A(f"s_mov_b32 s{d_+2}, {nb}"); A(f"s_mov_b32 s{d_+3}, 0x20000")
    C("d_debug[pair]: bits 19:0 = four 5-bit fields (16|xcc id), bits 22:20 = arrival ticket, bits 26:24 = done count")
    A("s_getreg_b32 s8, hwreg(HW_REG_XCC_ID, 0, 4)"); A("s_or_b32 s8, s8, 16")
    A(f"s_bfe_u32 s9, s2, {0x10000 | mbit[0]:#x}"); A(f"s_bfe_u32 s10, s2, {0x10000 | mbit[1]:#x}")
    A("s_lshl_b32 s10, s10, 1"); A("s_or_b32 s9, s9, s10")
    A("s_mul_i32 s10, s9, 5"); A("s_lshl_b32 s11, s8, s10"); A("s_or_b32 s10, s11, 0x100000")
    A("s_mul_i32 s8, s8, 0x8421")
    A("s_lshl_b32 s51, s4, 2"); A("v_mov_b32 v8, s51"); A("v_mov_b32 v9, s10")
    A("s_waitcnt lgkmcnt(0)")
    st(1)
    A("s_load_dword s27, s[44:45], s27")
    C("mark own mailbox empty (all ones)")
    A(f"buffer_store_dwordx4 v[12:15], v4, s[{SX}:{SX+3}], s50 offen")
    A(f"buffer_store_dwordx4 v[12:15], v4, s[{SX}:{SX+3}], s50 offen offset:1024")
    A("s_mov_b64 exec, 0xff")
    A(f"buffer_store_dwordx4 v[12:15], v4, s[{SX}:{SX+3}], s50 offen offset:2048")
    if fb:
        A("s_mov_b64 exec, 1")
        A("s_and_b32 s6, s2, 7"); A("s_lshl_b32 s6, s6, 12"); A(f"s_add_u32 s6, s6, {FLAGS:#x}")
        A("s_lshr_b32 s51, s2, 3"); A("s_lshl_b32 s51, s51, 2"); A("s_add_u32 s6, s6, s51")
        A(f"buffer_store_dword v4, v4, s[{SX}:{SX+3}], s6 offen")
    A("s_mov_b64 exec, -1")
    A("v_lshlrev_b32 v2, 5, v1")
    A(f"s_mov_b32 s49, {CEXP:#x}")
    A("v_lshrrev_b32 v7, 5, v1"); A("v_lshlrev_b32 v7, 3, v7")
    VT8 = 32
    A("v_mov_b32 v6, 0xff800000")
    for e in range(8): A(f"v_mov_b32 v{VT8+e}, 0")
    A("s_cmp_lg_u32 s9, 0"); A("s_cbranch_scc1 L_notree")
    C("tree token (one workgroup per pair): score + mask bias, value row")
    A(f"buffer_load_dwordx4 v[16:19], v4, s[{SQ}:{SQ+3}], s7 offen")
    A(f"buffer_load_dwordx4 v[20:23], v5, s[{SY}:{SY+3}], s26 offen")
    A(f"buffer_load_dwordx4 v[24:27], v5, s[{SZ}:{SZ+3}], s26 offen")
    A("s_waitcnt vmcnt(0) lgkmcnt(0)")
    A("v_mov_b32 v6, 0")
    for j in range(4):
        A(f"v_lshlrev_b32 v28, 16, v{16+j}"); A(f"v_lshlrev_b32 v29, 16, v{20+j}"); A("v_fmac_f32 v6, v28, v29")
        A(f"v_and_b32 v28, 0xffff0000, v{16+j}"); A(f"v_and_b32 v29, 0xffff0000, v{20+j}"); A("v_fmac_f32 v6, v28, v29")
    for s_ in (8, 4, 2, 1):
        A("s_nop 1"); A(f"v_add_f32_dpp v6, v6, v6 row_ror:{s_} row_mask:0xf bank_mask:0xf")
    A("v_mov_b32 v28, v6"); A("s_nop 1"); A("v_permlane16_swap_b32 v6, v28"); A("s_nop 1"); A("v_add_f32 v6, v6, v28")
    A("s_bitcmp1_b32 s4, 3")
    A("s_cselect_b32 s51, 0, 16"); A("s_lshl_b32 s27, s27, s51"); A("s_and_b32 s27, s27, 0xffff0000")
    A("v_mov_b32 v29, s27"); A("v_sub_f32 v29, 1.0, v29")
    A(f"v_mul_f32 v29, {f2u(-1.6e10):#x}, v29")
    A("v_add_f32 v6, v6, v29")
    for j in range(4):
        A(f"v_lshlrev_b32 v{VT8+2*j}, 16, v{24+j}"); A(f"v_and_b32 v{VT8+2*j+1}, 0xffff0000, v{24+j}")
    A("L_notree:")
    A("s_mov_b32 s56, -2")
    for j, mk_ in enumerate((mate[0], mate[1], mate[0] | mate[1])):
        A(f"s_xor_b32 s{57+j}, s50, {mk_ << 12:#x}")
    A("s_mov_b32 s5, 0x20000")
    A("s_waitcnt vmcnt(0) lgkmcnt(0)")
    if sat:
        A("s_lshl_b32 s6, s4, 2")
    if sat == 1:
        A("s_mov_b32 s10, s11")
        A("s_atomic_add s10, s[52:53], s6 glc")
        A("s_waitcnt lgkmcnt(0)")
        A("s_mov_b32 s10, 0x100000")
    st(2)
    A("s_barrier")
    st(3)
    C("near the end of the stream: take a ticket; the last of the four workgroups combines")
    MW = 40
    if not sat:
        A("s_mov_b64 exec, 1")
        A("global_atomic_add v9, v8, v9, s[52:53] sc0")
        A("s_mov_b64 exec, -1")
    for w in range(4): A(f"ds_read_b64 v[{MW+2*w}:{MW+2*w+1}], v7 offset:{16*w}")
    A("s_waitcnt lgkmcnt(0)")
    if sat: A("s_atomic_add s10, s[52:53], s6 glc")
    A(f"v_max3_f32 v10, v{MW}, v{MW+2}, v{MW+4}"); A(f"v_max3_f32 v10, v10, v{MW+6}, v6")
    for w in range(4): A(f"v_sub_f32 v{48+w}, v{MW+2*w}, v10")
    A("v_sub_f32 v52, v6, v10")
    for w in range(5): A(f"v_mul_f32 v{48+w}, s49, v{48+w}")
    for w in range(5): A(f"v_exp_f32 v{48+w}, v{48+w}")
    A("s_nop 0")
    A(f"v_fma_f32 v11, v48, v{MW+1}, v52")
    for w in range(1, 4): A(f"v_fmac_f32 v11, v{48+w}, v{MW+2*w+1}")
    O = 12
    A("v_min_u32 v10, s56, v10"); A("v_min_u32 v11, s56, v11")
    A("s_mov_b32 exec_lo, 1"); A("s_mov_b32 exec_hi, 1")
    A(f"buffer_store_dwordx2 v[10:11], v7, s[{SX}:{SX+3}], s50 offen offset:2048")
    A("s_mov_b64 exec, -1")
    for e in range(8): A(f"v_mul_f32 v{O+e}, v52, v{VT8+e}")
    if sat:
        A("s_waitcnt lgkmcnt(0)"); A("s_mov_b32 s51, s10")
    else:
        A("s_waitcnt vmcnt(0)")
        A("v_readfirstlane_b32 s51, v9")
    st(4)
    A("s_and_b32 s10, s51, 0xfffff"); A("s_or_b32 s10, s10, s11")
    A("s_bfe_u32 s51, s51, 0x30014")
    A("s_cmp_eq_u32 s51, 3"); A("s_cbranch_scc1 L_last")
    RD = 64
    def fma8(c, src):
        if pk:
            sel = "op_sel_hi:[0,1,1]" if c % 2 == 0 else "op_sel:[1,0,0] op_sel_hi:[1,1,1]"
            cb = c & ~1
            for e in range(0, 8, 2): A(f"v_pk_fma_f32 v[{O+e}:{O+e+1}], v[{cb}:{cb+1}], v[{src+e}:{src+e+1}], v[{O+e}:{O+e+1}] {sel}")
        else:
            for e in range(8): A(f"v_fmac_f32 v{O+e}, v{c}, v{src+e}")
    def ownmerge():
        for w in range(4):
            A(f"ds_read_b128 v[{RD+8*w}:{RD+8*w+3}], v2 offset:{LACC+2048*w}")
            A(f"ds_read_b128 v[{RD+8*w+4}:{RD+8*w+7}], v2 offset:{LACC+2048*w+16}")
        for w in range(4):
            A(f"s_waitcnt lgkmcnt({6-2*w})")
            fma8(48 + w, RD + 8 * w)
    C("producer")
    A("s_barrier")
    st(5)
    ownmerge()
    for e in range(4): A(f"v_min_u32 v{O+e}, s56, v{O+e}")
    A(f"buffer_store_dwordx4 v[{O}:{O+3}], v4, s[{SX}:{SX+3}], s50 offen")
    for e in range(4, 8): A(f"v_min_u32 v{O+e}, s56, v{O+e}")
    A(f"buffer_store_dwordx4 v[{O+4}:{O+7}], v4, s[{SX}:{SX+3}], s50 offen offset:1024")
    st(6)
    if sat == 2:
        A("s_mov_b32 s10, 0"); A("s_atomic_add s10, s[52:53], s6 glc"); A("s_waitcnt lgkmcnt(0)")
        A("s_and_b32 s10, s10, 0xfffff")
    elif sat == 0:
        A("global_load_dword v28, v8, s[52:53] sc1")
        A("s_waitcnt vmcnt(0)")
        A("v_readfirstlane_b32 s10, v28")
        A("s_and_b32 s10, s10, 0xfffff")
    A("s_cmp_eq_u32 s10, s8"); A("s_cbranch_scc1 " + ("L_pfin" if stamp else "L_done"))
    C("not known to share one XCD: publish write-through, then count as done")
    A(f"s_add_u32 s50, s50, {REGB:#x}")
    A(f"buffer_store_dwordx4 v[{O}:{O+3}], v4, s[{SX}:{SX+3}], s50 offen sc1")
    A(f"buffer_store_dwordx4 v[{O+4}:{O+7}], v4, s[{SX}:{SX+3}], s50 offen offset:1024 sc1")
    A("s_mov_b32 exec_lo, 1"); A("s_mov_b32 exec_hi, 1")
    A(f"buffer_store_dwordx2 v[10:11], v7, s[{SX}:{SX+3}], s50 offen offset:2048 sc1")
    A("s_mov_b64 exec, 1")
    A("v_mov_b32 v9, 0x1000000")
    A("s_waitcnt vmcnt(0)")
    A("global_atomic_add v8, v9, s[52:53]")
    if stamp:
        A("s_mov_b64 exec, -1")
        A("L_pfin:"); A("s_waitcnt vmcnt(0)"); st(7); A("s_branch L_hfin")
    else: A("s_endpgm")
    PM = 96
    def pollO():
        for j in range(3):
            b = PM + 12 * j
            A(f"buffer_load_dwordx4 v[{b}:{b+3}], v4, s[{SX}:{SX+3}], s{57+j} offen {ldsc}")
            A(f"buffer_load_dwordx4 v[{b+4}:{b+7}], v4, s[{SX}:{SX+3}], s{57+j} offen offset:1024 {ldsc}")
    def checkO():
        for j in range(3):
            b = PM + 12 * j
            A(f"s_waitcnt vmcnt({4-2*j})")
            for e in range(0, 8, 2):
                if j == 0 and e == 0: A(f"v_max_u32 v28, v{b}, v{b+1}")
                else: A(f"v_max3_u32 v28, v{b+e}, v{b+e+1}, v28")
        A("v_cmp_eq_u32 vcc, -1, v28")
    def accO():
        for j in range(3):
            fma8(53 + j, PM + 12 * j)
    A("L_last:")
    A("s_cmp_eq_u32 s10, s8"); A("s_cbranch_scc1 L_comb")
    C("different XCDs: wait for the three done marks, then read the write-through copies")
    A("L_wait:")
    A("global_load_dword v28, v8, s[52:53] sc1")
    A("s_waitcnt vmcnt(0)")
    A("v_readfirstlane_b32 s51, v28")
    A("s_sub_u32 s5, s5, 1"); A("s_cbranch_scc1 L_wend")
    A("s_bfe_u32 s51, s51, 0x30018")
    A("s_cmp_lg_u32 s51, 3"); A("s_cbranch_scc1 L_wait")
    A("L_wend:")
    for j in range(3): A(f"s_add_u32 s{57+j}, s{57+j}, {REGB:#x}")
    A("s_mov_b32 s5, 0x20000")
    A("L_comb:")
    for j in range(3):
        b = PM + 12 * j
        A(f"buffer_load_dwordx2 v[{b+8}:{b+9}], v7, s[{SX}:{SX+3}], s{57+j} offen offset:2048 {ldsc}")
    if otouch:
        A("s_mov_b64 exec, 1"); A(f"buffer_load_dword v31, v4, s[{SO}:{SO+3}], s7 offen"); A("s_mov_b64 exec, -1")
    if not noearly: pollO()
    A(f"s_waitcnt vmcnt({(0 if noearly else 6) + (1 if otouch else 0)})")
    A(f"v_max3_u32 v28, v{PM+8}, v{PM+9}, v{PM+20}"); A(f"v_max3_u32 v28, v{PM+21}, v{PM+32}, v28"); A(f"v_max_u32 v28, v{PM+33}, v28")
    A("v_cmp_eq_u32 vcc, -1, v28")
    A("s_sub_u32 s5, s5, 1")
    A("s_cbranch_scc1 L_mlok")
    A("s_cbranch_vccnz L_comb")
    A("L_mlok:")
    A(f"v_max3_f32 v28, v10, v{PM+8}, v{PM+20}"); A(f"v_max_f32 v28, v28, v{PM+32}")
    A("v_sub_f32 v52, v10, v28")
    for j in range(3): A(f"v_sub_f32 v{53+j}, v{PM+12*j+8}, v28")
    for j in range(4): A(f"v_mul_f32 v{52+j}, s49, v{52+j}")
    for j in range(4): A(f"v_exp_f32 v{52+j}, v{52+j}")
    A("v_mul_f32 v29, v52, v11")
    for j in range(3): A(f"v_fmac_f32 v29, v{53+j}, v{PM+12*j+9}")
    A("v_rcp_f32 v29, v29"); A("s_nop 0")
    for j in range(4): A(f"v_mul_f32 v{52+j}, v{52+j}, v29")
    for w in range(4): A(f"v_mul_f32 v{48+w}, v{48+w}, v52")
    for e in range(8): A(f"v_mul_f32 v{O+e}, v52, v{O+e}")
    A("s_mov_b32 s5, 0x20000")
    if not noearly:
        checkO()
        A("s_cbranch_vccnz L_late")
        A("L_early:")
        st(5)
        accO()
        A("s_barrier")
        st(6)
        ownmerge()
        A("s_branch L_out")
    A("L_late:")
    if pab: A("s_barrier"); pollO()
    else: pollO(); A("s_barrier")
    st(6)
    ownmerge()
    A("L_poll:")
    checkO()
    A("s_cbranch_vccz L_got")
    pollO()
    A("s_sub_u32 s5, s5, 1")
    A("s_cbranch_scc0 L_poll")
    A("s_waitcnt vmcnt(0)")
    A("L_got:")
    st(5)
    accO()
    A("L_out:")
    for e in range(4): A(f"v_cvt_pk_bf16_f32 v{24+e}, v{O+2*e}, v{O+2*e+1}")
    A(f"buffer_store_dwordx4 v[24:27], v4, s[{SO}:{SO+3}], s7 offen")
    if stamp:
        A("s_waitcnt vmcnt(0)"); st(7)
        A("L_hfin:")
        A("s_mov_b32 s3, 4")
        A("L_fin:")
        A("s_waitcnt lgkmcnt(0)")
        A(f"s_mov_b32 s{SX+2}, 0x20000000"); A(f"s_mov_b32 s{SX+3}, 0x20000")
        A(f"s_mul_i32 s51, s2, 5"); A("s_add_u32 s51, s51, s3"); A("s_lshl_b32 s51, s51, 5"); A("s_add_u32 s51, s51, 0x1000000")
        for i in range(8): A(f"v_mov_b32 v{32+i}, s{60+2*i}")
        A("v_mov_b32 v31, 0"); A("s_mov_b64 exec, 1")
        A(f"buffer_store_dwordx4 v[32:35], v31, s[{SX}:{SX+3}], s51 offen")
        A(f"buffer_store_dwordx4 v[36:39], v31, s[{SX}:{SX+3}], s51 offen offset:16")
    A("L_done:"); A("s_endpgm")
    if sel >= 0:
        per = 20
        A(".globl diag_kernel"); A(".p2align 8"); A(".type diag_kernel,@function"); A("diag_kernel:")
        A("s_cmp_ge_u32 s2, 1"); A("s_cbranch_scc1 L_done3")
        A("s_load_dwordx2 s[28:29], s[0:1], 64")
        A("v_lshlrev_b32 v1, 5, v0")
        A("s_mov_b32 s30, 0x20000000"); A("s_mov_b32 s31, 0x20000")
        A("s_waitcnt lgkmcnt(0)")
        A("s_mov_b32 s51, 0x1000000")
        for i in range(per):
            A(f"buffer_load_dword v{4+2*i}, v1, s[28:31], s51 offen")
            A(f"buffer_load_dword v{5+2*i}, v1, s[28:31], s51 offen offset:{4*sel}")
            A("s_add_u32 s51, s51, 2048")
        A("s_waitcnt vmcnt(0)")
        for i in range(1, per):
            A(f"v_min_u32 v4, v4, v{4+2*i}"); A(f"v_max_u32 v5, v5, v{5+2*i}")
        A("s_nop 1")
        A("v_readlane_b32 s4, v4, 0"); A("v_readlane_b32 s5, v5, 0")
        for l in range(1, 64):
            A(f"v_readlane_b32 s6, v4, {l}"); A(f"v_readlane_b32 s7, v5, {l}"); A("s_min_u32 s4, s4, s6"); A(f"s_max_u32 s5, s5, s7")
        A("s_sub_u32 s5, s5, s4"); A(f"s_mul_i32 s5, s5, {mult}")
        A("s_min_u32 s5, s5, 100000")
        A("s_memrealtime s[8:9]"); A("s_waitcnt lgkmcnt(0)")
        A("L_spin:"); A("s_memrealtime s[10:11]"); A("s_waitcnt lgkmcnt(0)"); A("s_sub_u32 s6, s10, s8"); A("s_cmp_lt_u32 s6, s5"); A("s_cbranch_scc1 L_spin")
        A("L_done3:"); A("s_endpgm")
    A('.section .rodata,"a"'); A(".p2align 6")
    need = max(nv, PM + 36)
    accum = (need + 3) // 4 * 4
    def kd(name, nvg):
        A(f".amdhsa_kernel {name}")
        A(f"  .amdhsa_next_free_vgpr {nvg}"); A("  .amdhsa_next_free_sgpr 80"); A(f"  .amdhsa_accum_offset {nvg}")
        A("  .amdhsa_group_segment_fixed_size 0"); A("  .amdhsa_kernarg_size 72"); A("  .amdhsa_user_sgpr_count 2")
        A("  .amdhsa_user_sgpr_kernarg_segment_ptr 1"); A("  .amdhsa_system_sgpr_workgroup_id_x 1")
        A("  .amdhsa_float_denorm_mode_32 3")
        A(".end_amdhsa_kernel")
    kd(KN, accum)
    if sel >= 0: A(".p2align 6"); kd("diag_kernel", 64)
    return "\n".join(L) + "\n"
if __name__ == "__main__":
    name = sys.argv[1]
    kw = {}
    for x in sys.argv[2:]:
        k, v = x.split("=")
        if k not in ('prof', 'wg', 'steps', 'xr'):
            try: v = int(v)
            except: pass
        if k.endswith("flags") or k.endswith("sc"): v = v.replace("+", " ").replace("none", "")
        kw[k] = v
    open(name, "w").write(gen(**kw))
```

```python
import sys, struct, math
KN = "standalone__tree_speculative_verify_tree_attention_over_candidate_token_tree__decode_kernel"
HEADER = open("standalone__tree_speculative_verify_tree_attention_over_candidate_token_tree__decode.s.ref").read().split("; Override launch geometry")[0]
def f2u(x): return struct.unpack("<I", struct.pack("<f", x))[0]
CEXP = f2u(0.0625 * 1.4426950408889634)

DOC = """
Split-KV decode attention (GQA 2:1), HBM-bound.  256 workgroups, four per (batch, kv-head) pair, 1024 keys each.
Waves 0-3: stream K (scores via MFMA, kept in registers), take the exact wave max, stream V (MFMA with P placed
on a diagonal so V needs no transpose).  About 20 KiB of loads in flight per CU; a wave that finds itself
late among its neighbours keeps a few more loads in flight for a while.
Wave 4: tree token, merge of the four waves through LDS, hand-off between the four workgroups of a pair.
Hand-off: each workgroup marks its d_ws mailbox empty (all ones) at start and takes a ticket in d_debug near
the end; the last ticket combines.  The ticket carries the XCD id: when all four share an XCD the mailbox is
read through that L2 (every word checked against the empty mark), otherwise write-through copy + done count.
"""
def gen(depth=5, slots=16, flags="nt", lds=90000, stamp=0, xb=8, dend=8, nend=12,
        wg="22,23,26,21,15,24,25,14", sel=-1, mult=8, ldsc="sc1", comments=1, sat=2, steps="13,17,16,18,19,20", fb=1, cp=200, lag=6, dmax=7, r0=64, a0=7, r1=112, a1=12, xr="5:20", pab=1, pk=1, otouch=0, noearly=0):
    nwg = 256; nstep = 64; nld = 128; n = 256
    wgb = [int(x) for x in wg.split(",")]
    holes = [b for b in wgb if b < 21]
    stepb = [b for b in range(13, 21) if b not in holes]
    if steps:
        st_ = [int(x) for x in steps.split(",")]
        assert sorted(st_) == stepb, (st_, stepb)
        stepb = st_
    assert len(stepb) == 6 and sorted(wgb) == sorted(holes + list(range(21, 27)))
    xl = [tuple(int(y) for y in x.split(":")) for x in xr.split(",")] if xr else []
    assert all(b in stepb for _, b in xl)
    mbit = [wgb.index(h) for h in holes]
    mate = [1 << b for b in mbit]
    def soff(s_): return sum(((s_ >> i) & 1) << b for i, b in enumerate(stepb))
    L = []; A = L.append
    def C(t):
        if comments: A("; " + t)
    LACC = 128
    FLAGS = 0x200000
    REGB = 0x100000
    ldsb = max(lds, LACC + 8192)
    A(HEADER.rstrip())
    if sel >= 0:
        A(f"; @launch kernel={KN} grid=({nwg},1,1) block=(320,1,1) lds={ldsb}")
        A(f"; @launch kernel=diag_kernel grid=(1,1,1) block=(64,1,1) lds=0")
    else:
        A(f"; @launch grid=({nwg},1,1) block=(320,1,1) lds={ldsb}")
    A('.amdgcn_target "amdgcn-amd-amdhsa--gfx950"')
    for t in DOC.strip("\n").split("\n"): C(t)
    A(".text"); A(f".globl {KN}"); A(".p2align 8"); A(f".type {KN},@function"); A(f"{KN}:")
    VOK, VOV, VOQ = 1, 2, 3
    VMASK = 4; VL, VM = 8, 9; VLA, VLM = 10, 11; ACC = 12; VA = 20; VQ = 32; VD = 40; VR = 56
    VS = VR + 4 * slots
    nv = VS + nstep
    assert nv <= 256
    SK, SV, SQ, SX = 12, 16, 20, 28
    def st(i):
        if stamp: A(f"s_memrealtime s[{60+2*i}:{61+2*i}]")
    def basecalc(dst, tmp):
        groups = []; i = 0
        while i < 8:
            j = i
            while j + 1 < 8 and wgb[j + 1] == wgb[j] + 1: j += 1
            groups.append((i, j)); i = j + 1
        for n_, (i, j) in enumerate(groups):
            m = ((1 << (j - i + 1)) - 1) << i
            r = dst if n_ == 0 else tmp
            A(f"s_and_b32 {r}, s2, {m:#x}"); A(f"s_lshl_b32 {r}, {r}, {wgb[i]-i}")
            if n_: A(f"s_or_b32 {dst}, {dst}, {tmp}")
        for i, b in xl:
            A(f"s_and_b32 {tmp}, s2, {1 << i:#x}"); A(f"s_lshl_b32 {tmp}, {tmp}, {b-i}"); A(f"s_xor_b32 {dst}, {dst}, {tmp}")
    st(0)
    C("waves 0-3 stream K then V (256 keys each); wave 4 merges partial results")
    A(f"s_load_dwordx2 s[{SK}:{SK+1}], s[0:1], 8")
    A(f"s_load_dwordx2 s[{SQ}:{SQ+1}], s[0:1], 0")
    A(f"s_load_dwordx2 s[{SV}:{SV+1}], s[0:1], 16")
    A("v_lshrrev_b32 v31, 6, v0")
    A("v_cmp_lt_u32 vcc, 3, v31")
    A(f"s_cmpk_ge_u32 s2, {nwg}"); A("s_cbranch_scc1 L_done")
    C("s47 = byte offset of this workgroup's slice inside k_cache / v_cache (bits 26:21 = (b,hkv) pair)")
    basecalc("s47", "s46")
    A("s_cbranch_vccnz L_helper")
    A("v_and_b32 v28, 3, v0")
    A("v_bfe_u32 v29, v0, 4, 2")
    A("v_lshl_add_u32 v28, v29, 2, v28")
    A("v_lshlrev_b32 v28, 4, v28")
    A("v_bfe_u32 v30, v0, 2, 2")
    A("v_lshl_add_u32 v30, v31, 2, v30")
    A(f"v_lshl_add_u32 v{VOK}, v30, 9, v28")
    A(f"s_brev_b32 s{SK+2}, 16"); A(f"s_mov_b32 s{SK+3}, 0x20000")
    cur = {"issued": 0}; order = []
    def load1():
        i = cur["issued"]; assert i < n
        cur["issued"] = i + 1
        tn = "k" if i < nld else "v"
        s, hf = divmod(i % nld, 2)
        so = "s47" if s == 0 else "s48"
        if hf == 0 and s > 0: A(f"s_xor_b32 s48, s47, {soff(s):#x}")
        r = VR + (i % slots) * 4
        if tn == "k": A(f"buffer_load_dwordx4 v[{r}:{r+3}], v{VOK}, s[{SK}:{SK+3}], {so} offen offset:{256*hf} {flags}")
        else: A(f"buffer_load_dwordx4 v[{r}:{r+3}], v{VOV}, s[{SV}:{SV+3}], {so} offen offset:{256*hf} {flags}")
        order.append(("d", i))
    done = {"pos": -1}
    def isst(op): return op == ("f", 1)
    def emit_wait(N):
        A(f"s_waitcnt vmcnt({N})")
        lds_ = [p for p, op in enumerate(order) if not isst(op)]
        if len(lds_) > N: done["pos"] = max(done["pos"], lds_[len(lds_) - 1 - N])
    def wait_for(op):
        p = order.index(op)
        if p <= done["pos"]: return
        emit_wait(sum(1 for o in order[p + 1:] if not isst(o)))
    def sdep(j):
        if dend and j >= n - nend: return dend
        return depth
    A("s_waitcnt lgkmcnt(0)")
    st(1)
    for i in range(depth): load1()
    A("v_bfe_u32 v30, v0, 3, 1")
    A(f"v_lshl_add_u32 v{VOQ}, v30, 9, v28")
    A("s_lshr_b32 s7, s47, 21"); A("s_lshl_b32 s7, s7, 10")
    A(f"s_mov_b32 s{SQ+2}, 0x10000"); A(f"s_mov_b32 s{SQ+3}, 0x20000")
    for j in range(2):
        A(f"buffer_load_dwordx4 v[{VQ+4*j}:{VQ+4*j+3}], v{VOQ}, s[{SQ}:{SQ+3}], s7 offen offset:{256*j}")
        order.append(("q", j))
    A(f"s_brev_b32 s{SV+2}, 16"); A(f"s_mov_b32 s{SV+3}, 0x20000")
    if fb:
        A(f"s_load_dwordx2 s[{SX}:{SX+1}], s[0:1], 64")
        A(f"s_mov_b32 s{SX+2}, {FLAGS+0x8000:#x}"); A(f"s_mov_b32 s{SX+3}, 0x20000")
        A("s_and_b32 s50, s2, 7"); A("s_lshl_b32 s50, s50, 12"); A(f"s_add_u32 s50, s50, {FLAGS:#x}")
        A("s_lshr_b32 s51, s2, 3"); A("s_lshl_b32 s51, s51, 2")
    A("v_and_b32 v30, 15, v0")
    A("v_lshl_add_u32 v28, v31, 2, v29")
    A("v_lshlrev_b32 v28, 9, v28")
    A(f"v_lshl_add_u32 v{VOV}, v30, 4, v28")
    A(f"v_lshlrev_b32 v{VLA}, 5, v30")
    A("v_and_b32 v28, 1, v29"); A(f"v_lshl_add_u32 v{VLA}, v28, 4, v{VLA}")
    A("v_lshrrev_b32 v28, 5, v0"); A(f"v_lshl_add_u32 v{VLA}, v28, 10, v{VLA}")
    A("v_bfe_u32 v28, v0, 3, 1"); A("v_lshl_add_u32 v28, v31, 1, v28"); A(f"v_lshlrev_b32 v{VLM}, 3, v28")
    A(f"v_and_b32 v30, 1, v0"); A("v_lshlrev_b32 v30, 4, v30"); A("v_mov_b32 v31, 0xffff"); A("v_lshlrev_b32 v30, v30, v31")
    A(f"v_bfe_u32 v29, v0, 1, 2")
    for j in range(4):
        A(f"v_cmp_eq_u32 vcc, {j}, v29"); A(f"v_mov_b32 v{ACC+2*j}, 0"); A(f"v_mov_b32 v{ACC+2*j+1}, 0"); A(f"v_cndmask_b32 v{VMASK+j}, 0, v30, vcc")
    A(f"v_mov_b32 v{VL}, 0"); A(f"v_mov_b32 v{VM}, 0xff800000")
    A(f"s_mov_b32 s49, {CEXP:#x}")
    cons = {"c": 0}
    st0 = cp + lag + 1
    def boostable(j): return fb and st0 <= j < n - nend
    def advance(i):
        while True:
            j = cur["issued"]
            mid = fb and cp < j < st0
            ahead = dmax if boostable(j) else (depth + 1 if mid else sdep(j))
            if j >= n or j > i + ahead: break
            assert j - slots < cons["c"], (j, cons)
            if boostable(j):
                A(f"s_cmp_gt_u32 s54, {j - st0}"); A(f"s_cbranch_scc1 L_b{j}")
                A(f"s_waitcnt vmcnt({len(order) - 1 - order.index(('d', j - depth))})")
                A(f"L_b{j}:")
            if mid: emit_wait(len(order) - 1 - order.index(("d", j - depth)))
            wait_for(("d", j - ahead))
            load1()
            if fb and j == cp:
                C("progress check: how many waves of this group passed this point earlier?")
                A(f"buffer_load_ushort v30, v{VOQ}, s[{SX}:{SX+3}], s50 offen nt"); order.append(("f", 0))
                A("s_mov_b64 exec, 1")
                A(f"buffer_store_byte v{VQ+1}, v{VQ}, s[{SX}:{SX+3}], s50 offen"); order.append(("f", 1))
                A("s_mov_b64 exec, -1")
            if fb and j == cp + lag:
                wait_for(("f", 0))
                A("v_cmp_lt_u32 vcc, 0xff, v30"); A("v_and_b32 v30, 0xff, v30"); A("s_bcnt1_i32_b64 s54, vcc")
                A("v_cmp_ne_u32 vcc, 0, v30"); A("s_nop 1"); A("s_bcnt1_i32_b64 s55, vcc"); A("s_add_u32 s54, s54, s55")
                if stamp: A("s_mov_b32 s72, s54")
                A(f"s_sub_i32 s55, s54, {r1}"); A("s_max_i32 s55, s55, 0"); A(f"s_mul_i32 s55, s55, {a1}")
                A(f"s_sub_i32 s54, s54, {r0}"); A("s_max_i32 s54, s54, 0"); A(f"s_mul_i32 s54, s54, {a0}")
                A("s_add_u32 s54, s54, s55"); A("s_lshr_b32 s54, s54, 4")
        wait_for(("d", i))
    for i in range(depth):
        wait_for(("d", i))
        if i == 0: st(2)
        load1()
    wait_for(("q", 1))
    def diagop(d, dst, c):
        if c == 0: A(f"v_mov_b32_dpp v{dst}, v{d} quad_perm:[0,0,0,0] row_mask:0xf bank_mask:0xf")
        else: A(f"v_add_f32_dpp v{dst}, v{d+c}, v{dst} quad_perm:[{c},{c},{c},{c}] row_mask:0xf bank_mask:0xf")
    def chain_ops(h):
        for t in range(nstep):
            k = h - (2 * t + 3)
            if 0 <= k < 4: diagop(VD + 4 * (t % 4), VS + t, k)
            if k == 4 and t % 2 == 1: A(f"v_max3_f32 v{VM}, v{VS+t-1}, v{VS+t}, v{VM}")
    C("K phase: per step 4 keys; D[(key,c)][(head,c')] partial dot products, diagonal c==c' summed with DPP")
    for s in range(nstep):
        d = VD + 4 * (s % 4)
        for hf in range(2):
            i = 2 * s + hf
            mark = len(L)
            advance(i)
            r = VR + (i % slots) * 4
            c = "0" if hf == 0 else f"v[{d}:{d+3}]"
            A(f"v_mfma_f32_16x16x32_bf16 v[{d}:{d+3}], v[{r}:{r+3}], v[{VQ+4*hf}:{VQ+4*hf+3}], {c}")
            cons["c"] = i + 1
            if len(L) - mark < 3 or i <= 5: A("s_nop 3")
            chain_ops(i)
    st(3)
    for h in range(2 * nstep, 2 * nstep + 6):
        A("s_nop 2" if h < 2 * nstep + 2 else "s_nop 1")
        chain_ops(h)
    def xrow(reg, op):
        A(f"v_mov_b32 v28, v{reg}"); A("s_nop 1"); A(f"v_permlane32_swap_b32 v{reg}, v28"); A("s_nop 1"); A(f"{op} v{reg}, v{reg}, v28")
        A(f"v_mov_b32 v28, v{reg}"); A("s_nop 1"); A(f"v_permlane16_swap_b32 v{reg}, v28"); A("s_nop 1"); A(f"{op} v{reg}, v{reg}, v28")
    C("wave max per head")
    xrow(VM, "v_max_f32")
    def mkP2(t):
        a, b = VS + t, VS + t + 1
        A(f"v_sub_f32 v28, v{a}, v{VM}"); A(f"v_sub_f32 v29, v{b}, v{VM}")
        A("v_mul_f32 v28, s49, v28"); A("v_mul_f32 v29, s49, v29")
        A("v_exp_f32 v28, v28"); A("v_exp_f32 v29, v29")
        A(f"v_cvt_pk_bf16_f32 v{a}, v28, v28"); A(f"v_add_f32 v{VL}, v{VL}, v28")
        A(f"v_cvt_pk_bf16_f32 v{b}, v29, v29"); A(f"v_add_f32 v{VL}, v{VL}, v29")
    def mkA(t):
        a = VA + 4 * (t % 2)
        for j in range(4): A(f"v_and_b32 v{a+j}, v{VS+t}, v{VMASK+j}")
    C("V phase: A[(head,e)][(key,e')] = P[head][key] * delta(e,e'), B = V rows as loaded")
    mkP2(0); mkA(0); A("s_nop 1")
    for k in range(nstep):
        a = VA + 4 * (k % 2)
        for hf in range(2):
            i = nld + 2 * k + hf
            advance(i)
            r = VR + (i % slots) * 4
            A(f"v_mfma_f32_16x16x32_bf16 v[{ACC+4*hf}:{ACC+4*hf+3}], v[{a}:{a+3}], v[{r}:{r+3}], v[{ACC+4*hf}:{ACC+4*hf+3}]")
            cons["c"] = i + 1
            if hf == 0 and k + 1 < nstep: mkA(k + 1)
            if hf == 1 and 2 * k + 2 < nstep: mkP2(2 * k + 2)
            if hf == 1 and 2 * k + 2 == nstep:
                xrow(VL, "v_add_f32")
                A(f"ds_write2_b32 v{VLM}, v{VM}, v{VL} offset0:0 offset1:1")
            if fb and hf == 0 and k == 2:
                assert cur["issued"] < cp
                A(f"v_and_b32 v{VOQ}, 63, v0"); A(f"v_lshlrev_b32 v{VOQ}, 1, v{VOQ}")
                A(f"v_lshrrev_b32 v{VQ}, 6, v0"); A(f"v_add_u32 v{VQ}, s51, v{VQ}"); A(f"v_mov_b32 v{VQ+1}, 1")
                A("s_waitcnt lgkmcnt(0)")
            if hf == 1 and k == nstep - 1 - xb:
                A("s_waitcnt lgkmcnt(0)"); A("s_barrier")
    st(4)
    A("s_nop 5")
    A(f"ds_write_b128 v{VLA}, v[{ACC}:{ACC+3}] offset:{LACC}")
    A("s_nop 0")
    A(f"ds_write_b128 v{VLA}, v[{ACC+4}:{ACC+7}] offset:{512+LACC}")
    A("s_waitcnt lgkmcnt(0)"); A("s_barrier")
    if stamp:
        A("s_mov_b64 exec, -1")
        st(5); st(7)
        if fb: A("s_mul_i32 s72, s72, 100"); A("s_add_u32 s72, s72, s60")
        else: st(6)
        A(f"s_load_dwordx2 s[{SX}:{SX+1}], s[0:1], 64")
        A("v_lshrrev_b32 v31, 6, v0"); A("s_nop 0"); A("v_readfirstlane_b32 s3, v31")
        A("s_branch L_fin")
    else:
        A("s_endpgm")
    A(".p2align 6")
    A("L_helper:")
    SY, SZ, SO = 32, 36, 40
    A(f"s_load_dwordx2 s[{SX}:{SX+1}], s[0:1], 64")
    A("s_load_dwordx2 s[52:53], s[0:1], 56")
    A(f"s_load_dwordx2 s[{SY}:{SY+1}], s[0:1], 24")
    A(f"s_load_dwordx2 s[{SZ}:{SZ+1}], s[0:1], 32")
    A(f"s_load_dwordx2 s[44:45], s[0:1], 40")
    A(f"s_load_dwordx2 s[{SO}:{SO+1}], s[0:1], 48")
    A("v_and_b32 v1, 63, v0")
    A("v_lshlrev_b32 v4, 4, v1")
    for r in range(4): A(f"v_mov_b32 v{12+r}, -1")
    A(f"s_mov_b32 s{SX+2}, {FLAGS+0x8000:#x}"); A(f"s_mov_b32 s{SX+3}, 0x20000")
    A("s_lshl_b32 s50, s2, 12")
    A("s_lshr_b32 s4, s47, 21")
    A("s_lshr_b32 s27, s4, 4"); A("s_lshl_b32 s27, s27, 2")
    A("s_lshl_b32 s7, s4, 10"); A("s_lshl_b32 s26, s4, 9")
    A("v_and_b32 v5, 0x1f0, v4")
    for d_, nb in ((SQ, 65536), (SY, 32768), (SZ, 32768), (SO, 65536)):
        A(f"s_mov_b32 s{d_+2}, {nb}"); A(f"s_mov_b32 s{d_+3}, 0x20000")
    C("d_debug[pair]: bits 19:0 = four 5-bit fields (16|xcc id), bits 22:20 = arrival ticket, bits 26:24 = done count")
    A("s_getreg_b32 s8, hwreg(HW_REG_XCC_ID, 0, 4)"); A("s_or_b32 s8, s8, 16")
    A(f"s_bfe_u32 s9, s2, {0x10000 | mbit[0]:#x}"); A(f"s_bfe_u32 s10, s2, {0x10000 | mbit[1]:#x}")
    A("s_lshl_b32 s10, s10, 1"); A("s_or_b32 s9, s9, s10")
    A("s_mul_i32 s10, s9, 5"); A("s_lshl_b32 s11, s8, s10"); A("s_or_b32 s10, s11, 0x100000")
    A("s_mul_i32 s8, s8, 0x8421")
    A("s_lshl_b32 s51, s4, 2"); A("v_mov_b32 v8, s51"); A("v_mov_b32 v9, s10")
    A("s_waitcnt lgkmcnt(0)")
    st(1)
    A("s_load_dword s27, s[44:45], s27")
    C("mark own mailbox empty (all ones)")
    A(f"buffer_store_dwordx4 v[12:15], v4, s[{SX}:{SX+3}], s50 offen")
    A(f"buffer_store_dwordx4 v[12:15], v4, s[{SX}:{SX+3}], s50 offen offset:1024")
    A("s_mov_b64 exec, 0xff")
    A(f"buffer_store_dwordx4 v[12:15], v4, s[{SX}:{SX+3}], s50 offen offset:2048")
    if fb:
        A("s_mov_b64 exec, 1")
        A("s_and_b32 s6, s2, 7"); A("s_lshl_b32 s6, s6, 12"); A(f"s_add_u32 s6, s6, {FLAGS:#x}")
        A("s_lshr_b32 s51, s2, 3"); A("s_lshl_b32 s51, s51, 2"); A("s_add_u32 s6, s6, s51")
        A(f"buffer_store_dword v4, v4, s[{SX}:{SX+3}], s6 offen")
    A("s_mov_b64 exec, -1")
    A("v_lshlrev_b32 v2, 5, v1")
    A(f"s_mov_b32 s49, {CEXP:#x}")
    A("v_lshrrev_b32 v7, 5, v1"); A("v_lshlrev_b32 v7, 3, v7")
    VT8 = 32
    A("v_mov_b32 v6, 0xff800000")
    for e in range(8): A(f"v_mov_b32 v{VT8+e}, 0")
    A("s_cmp_lg_u32 s9, 0"); A("s_cbranch_scc1 L_notree")
    C("tree token (one workgroup per pair): score + mask bias, value row")
    A(f"buffer_load_dwordx4 v[16:19], v4, s[{SQ}:{SQ+3}], s7 offen")
    A(f"buffer_load_dwordx4 v[20:23], v5, s[{SY}:{SY+3}], s26 offen")
    A(f"buffer_load_dwordx4 v[24:27], v5, s[{SZ}:{SZ+3}], s26 offen")
    A("s_waitcnt vmcnt(0) lgkmcnt(0)")
    A("v_mov_b32 v6, 0")
    for j in range(4):
        A(f"v_lshlrev_b32 v28, 16, v{16+j}"); A(f"v_lshlrev_b32 v29, 16, v{20+j}"); A("v_fmac_f32 v6, v28, v29")
        A(f"v_and_b32 v28, 0xffff0000, v{16+j}"); A(f"v_and_b32 v29, 0xffff0000, v{20+j}"); A("v_fmac_f32 v6, v28, v29")
    for s_ in (8, 4, 2, 1):
        A("s_nop 1"); A(f"v_add_f32_dpp v6, v6, v6 row_ror:{s_} row_mask:0xf bank_mask:0xf")
    A("v_mov_b32 v28, v6"); A("s_nop 1"); A("v_permlane16_swap_b32 v6, v28"); A("s_nop 1"); A("v_add_f32 v6, v6, v28")
    A("s_bitcmp1_b32 s4, 3")
    A("s_cselect_b32 s51, 0, 16"); A("s_lshl_b32 s27, s27, s51"); A("s_and_b32 s27, s27, 0xffff0000")
    A("v_mov_b32 v29, s27"); A("v_sub_f32 v29, 1.0, v29")
    A(f"v_mul_f32 v29, {f2u(-1.6e10):#x}, v29")
    A("v_add_f32 v6, v6, v29")
    for j in range(4):
        A(f"v_lshlrev_b32 v{VT8+2*j}, 16, v{24+j}"); A(f"v_and_b32 v{VT8+2*j+1}, 0xffff0000, v{24+j}")
    A("L_notree:")
    A("s_mov_b32 s56, -2")
    for j, mk_ in enumerate((mate[0], mate[1], mate[0] | mate[1])):
        A(f"s_xor_b32 s{57+j}, s50, {mk_ << 12:#x}")
    A("s_mov_b32 s5, 0x100000")
    A("s_waitcnt vmcnt(0) lgkmcnt(0)")
    if sat:
        A("s_lshl_b32 s6, s4, 2")
    if sat == 1:
        A("s_mov_b32 s10, s11")
        A("s_atomic_add s10, s[52:53], s6 glc")
        A("s_waitcnt lgkmcnt(0)")
        A("s_mov_b32 s10, 0x100000")
    st(2)
    A("s_barrier")
    st(3)
    C("near the end of the stream: take a ticket; the last of the four workgroups combines")
    MW = 40
    if not sat:
        A("s_mov_b64 exec, 1")
        A("global_atomic_add v9, v8, v9, s[52:53] sc0")
        A("s_mov_b64 exec, -1")
    for w in range(4): A(f"ds_read_b64 v[{MW+2*w}:{MW+2*w+1}], v7 offset:{16*w}")
    A("s_waitcnt lgkmcnt(0)")
    if sat: A("s_atomic_add s10, s[52:53], s6 glc")
    A(f"v_max3_f32 v10, v{MW}, v{MW+2}, v{MW+4}"); A(f"v_max3_f32 v10, v10, v{MW+6}, v6")
    for w in range(4): A(f"v_sub_f32 v{48+w}, v{MW+2*w}, v10")
    A("v_sub_f32 v52, v6, v10")
    for w in range(5): A(f"v_mul_f32 v{48+w}, s49, v{48+w}")
    for w in range(5): A(f"v_exp_f32 v{48+w}, v{48+w}")
    A("s_nop 0")
    A(f"v_fma_f32 v11, v48, v{MW+1}, v52")
    for w in range(1, 4): A(f"v_fmac_f32 v11, v{48+w}, v{MW+2*w+1}")
    O = 12
    A("v_min_u32 v10, s56, v10"); A("v_min_u32 v11, s56, v11")
    A("s_mov_b32 exec_lo, 1"); A("s_mov_b32 exec_hi, 1")
    A(f"buffer_store_dwordx2 v[10:11], v7, s[{SX}:{SX+3}], s50 offen offset:2048")
    A("s_mov_b64 exec, -1")
    for e in range(8): A(f"v_mul_f32 v{O+e}, v52, v{VT8+e}")
    if sat:
        A("s_waitcnt lgkmcnt(0)"); A("s_mov_b32 s51, s10")
    else:
        A("s_waitcnt vmcnt(0)")
        A("v_readfirstlane_b32 s51, v9")
    st(4)
    A("s_and_b32 s10, s51, 0xfffff"); A("s_or_b32 s10, s10, s11")
    A("s_and_b32 s51, s51, 0xfcf00000")
    A("s_cmp_eq_u32 s51, 0x300000"); A("s_cbranch_scc1 L_last")
    RD = 64
    def fma8(c, src):
        if pk:
            sel = "op_sel_hi:[0,1,1]" if c % 2 == 0 else "op_sel:[1,0,0] op_sel_hi:[1,1,1]"
            cb = c & ~1
            for e in range(0, 8, 2): A(f"v_pk_fma_f32 v[{O+e}:{O+e+1}], v[{cb}:{cb+1}], v[{src+e}:{src+e+1}], v[{O+e}:{O+e+1}] {sel}")
        else:
            for e in range(8): A(f"v_fmac_f32 v{O+e}, v{c}, v{src+e}")
    def ownmerge():
        for w in range(4):
            A(f"ds_read_b128 v[{RD+8*w}:{RD+8*w+3}], v2 offset:{LACC+2048*w}")
            A(f"ds_read_b128 v[{RD+8*w+4}:{RD+8*w+7}], v2 offset:{LACC+2048*w+16}")
        for w in range(4):
            A(f"s_waitcnt lgkmcnt({6-2*w})")
            fma8(48 + w, RD + 8 * w)
    C("producer")
    A("s_barrier")
    st(5)
    ownmerge()
    for e in range(4): A(f"v_min_u32 v{O+e}, s56, v{O+e}")
    A(f"buffer_store_dwordx4 v[{O}:{O+3}], v4, s[{SX}:{SX+3}], s50 offen")
    for e in range(4, 8): A(f"v_min_u32 v{O+e}, s56, v{O+e}")
    A(f"buffer_store_dwordx4 v[{O+4}:{O+7}], v4, s[{SX}:{SX+3}], s50 offen offset:1024")
    st(6)
    if sat == 2:
        A("s_mov_b32 s10, 0"); A("s_atomic_add s10, s[52:53], s6 glc"); A("s_waitcnt lgkmcnt(0)")
        A("s_and_b32 s10, s10, 0xfffff")
    elif sat == 0:
        A("global_load_dword v28, v8, s[52:53] sc1")
        A("s_waitcnt vmcnt(0)")
        A("v_readfirstlane_b32 s10, v28")
        A("s_and_b32 s10, s10, 0xfffff")
    A("s_cmp_eq_u32 s10, s8"); A("s_cbranch_scc1 " + ("L_pfin" if stamp else "L_done"))
    C("not known to share one XCD: publish write-through, then count as done")
    A(f"s_add_u32 s50, s50, {REGB:#x}")
    A(f"buffer_store_dwordx4 v[{O}:{O+3}], v4, s[{SX}:{SX+3}], s50 offen sc1")
    A(f"buffer_store_dwordx4 v[{O+4}:{O+7}], v4, s[{SX}:{SX+3}], s50 offen offset:1024 sc1")
    A("s_mov_b32 exec_lo, 1"); A("s_mov_b32 exec_hi, 1")
    A(f"buffer_store_dwordx2 v[10:11], v7, s[{SX}:{SX+3}], s50 offen offset:2048 sc1")
    A("s_mov_b64 exec, 1")
    A("v_mov_b32 v9, 0x1000000")
    A("s_waitcnt vmcnt(0)")
    A("global_atomic_add v8, v9, s[52:53]")
    if stamp:
        A("s_mov_b64 exec, -1")
        A("L_pfin:"); A("s_waitcnt vmcnt(0)"); st(7); A("s_branch L_hfin")
    else: A("s_endpgm")
    PM = 96
    def pollO():
        for j in range(3):
            b = PM + 12 * j
            A(f"buffer_load_dwordx4 v[{b}:{b+3}], v4, s[{SX}:{SX+3}], s{57+j} offen {ldsc}")
            A(f"buffer_load_dwordx4 v[{b+4}:{b+7}], v4, s[{SX}:{SX+3}], s{57+j} offen offset:1024 {ldsc}")
    def checkO():
        for j in range(3):
            b = PM + 12 * j
            A(f"s_waitcnt vmcnt({4-2*j})")
            for e in range(0, 8, 2):
                if j == 0 and e == 0: A(f"v_max_u32 v28, v{b}, v{b+1}")
                else: A(f"v_max3_u32 v28, v{b+e}, v{b+e+1}, v28")
        A("v_cmp_eq_u32 vcc, -1, v28")
    def accO():
        for j in range(3):
            fma8(53 + j, PM + 12 * j)
    A("L_last:")
    A("s_cmp_eq_u32 s10, s8"); A("s_cbranch_scc1 L_comb")
    C("different XCDs: wait for the three done marks, then read the write-through copies")
    A("L_wait:")
    A("global_load_dword v28, v8, s[52:53] sc1")
    A("s_waitcnt vmcnt(0)")
    A("v_readfirstlane_b32 s51, v28")
    A("s_sub_u32 s5, s5, 1"); A("s_cbranch_scc1 L_wend")
    A("s_bfe_u32 s51, s51, 0x30018")
    A("s_cmp_lg_u32 s51, 3"); A("s_cbranch_scc1 L_wait")
    A("L_wend:")
    for j in range(3): A(f"s_add_u32 s{57+j}, s{57+j}, {REGB:#x}")
    A("s_mov_b32 s5, 0x100000")
    A("L_comb:")
    for j in range(3):
        b = PM + 12 * j
        A(f"buffer_load_dwordx2 v[{b+8}:{b+9}], v7, s[{SX}:{SX+3}], s{57+j} offen offset:2048 {ldsc}")
    if otouch:
        A("s_mov_b64 exec, 1"); A(f"buffer_load_dword v31, v4, s[{SO}:{SO+3}], s7 offen"); A("s_mov_b64 exec, -1")
    if not noearly: pollO()
    A(f"s_waitcnt vmcnt({(0 if noearly else 6) + (1 if otouch else 0)})")
    A(f"v_max3_u32 v28, v{PM+8}, v{PM+9}, v{PM+20}"); A(f"v_max3_u32 v28, v{PM+21}, v{PM+32}, v28"); A(f"v_max_u32 v28, v{PM+33}, v28")
    A("v_cmp_eq_u32 vcc, -1, v28")
    A("s_sub_u32 s5, s5, 1")
    A("s_cbranch_scc1 L_mlok")
    A("s_cbranch_vccnz L_comb")
    A("L_mlok:")
    A(f"v_max3_f32 v28, v10, v{PM+8}, v{PM+20}"); A(f"v_max_f32 v28, v28, v{PM+32}")
    A("v_sub_f32 v52, v10, v28")
    for j in range(3): A(f"v_sub_f32 v{53+j}, v{PM+12*j+8}, v28")
    for j in range(4): A(f"v_mul_f32 v{52+j}, s49, v{52+j}")
    for j in range(4): A(f"v_exp_f32 v{52+j}, v{52+j}")
    A("v_mul_f32 v29, v52, v11")
    for j in range(3): A(f"v_fmac_f32 v29, v{53+j}, v{PM+12*j+9}")
    A("v_rcp_f32 v29, v29"); A("s_nop 0")
    for j in range(4): A(f"v_mul_f32 v{52+j}, v{52+j}, v29")
    for w in range(4): A(f"v_mul_f32 v{48+w}, v{48+w}, v52")
    for e in range(8): A(f"v_mul_f32 v{O+e}, v52, v{O+e}")
    A("s_mov_b32 s5, 0x100000")
    if not noearly:
        checkO()
        A("s_cbranch_vccnz L_late")
        A("L_early:")
        st(5)
        accO()
        A("s_barrier")
        st(6)
        ownmerge()
        A("s_branch L_out")
    A("L_late:")
    if pab: A("s_barrier"); pollO()
    else: pollO(); A("s_barrier")
    st(6)
    ownmerge()
    A("L_poll:")
    checkO()
    A("s_cbranch_vccz L_got")
    pollO()
    A("s_sub_u32 s5, s5, 1")
    A("s_cbranch_scc0 L_poll")
    A("s_waitcnt vmcnt(0)")
    A("L_got:")
    st(5)
    accO()
    A("L_out:")
    for e in range(4): A(f"v_cvt_pk_bf16_f32 v{24+e}, v{O+2*e}, v{O+2*e+1}")
    A(f"buffer_store_dwordx4 v[24:27], v4, s[{SO}:{SO+3}], s7 offen")
    if stamp:
        A("s_waitcnt vmcnt(0)"); st(7)
        A("L_hfin:")
        A("s_mov_b32 s3, 4")
        A("L_fin:")
        A("s_waitcnt lgkmcnt(0)")
        A(f"s_mov_b32 s{SX+2}, 0x20000000"); A(f"s_mov_b32 s{SX+3}, 0x20000")
        A(f"s_mul_i32 s51, s2, 5"); A("s_add_u32 s51, s51, s3"); A("s_lshl_b32 s51, s51, 5"); A("s_add_u32 s51, s51, 0x1000000")
        for i in range(8): A(f"v_mov_b32 v{32+i}, s{60+2*i}")
        A("v_mov_b32 v31, 0"); A("s_mov_b64 exec, 1")
        A(f"buffer_store_dwordx4 v[32:35], v31, s[{SX}:{SX+3}], s51 offen")
        A(f"buffer_store_dwordx4 v[36:39], v31, s[{SX}:{SX+3}], s51 offen offset:16")
    A("L_done:"); A("s_endpgm")
    if sel >= 0:
        per = 20
        A(".globl diag_kernel"); A(".p2align 8"); A(".type diag_kernel,@function"); A("diag_kernel:")
        A("s_cmp_ge_u32 s2, 1"); A("s_cbranch_scc1 L_done3")
        A("s_load_dwordx2 s[28:29], s[0:1], 64")
        A("v_lshlrev_b32 v1, 5, v0")
        A("s_mov_b32 s30, 0x20000000"); A("s_mov_b32 s31, 0x20000")
        A("s_waitcnt lgkmcnt(0)")
        A("s_mov_b32 s51, 0x1000000")
        for i in range(per):
            A(f"buffer_load_dword v{4+2*i}, v1, s[28:31], s51 offen")
            A(f"buffer_load_dword v{5+2*i}, v1, s[28:31], s51 offen offset:{4*sel}")
            A("s_add_u32 s51, s51, 2048")
        A("s_waitcnt vmcnt(0)")
        for i in range(1, per):
            A(f"v_min_u32 v4, v4, v{4+2*i}"); A(f"v_max_u32 v5, v5, v{5+2*i}")
        A("s_nop 1")
        A("v_readlane_b32 s4, v4, 0"); A("v_readlane_b32 s5, v5, 0")
        for l in range(1, 64):
            A(f"v_readlane_b32 s6, v4, {l}"); A(f"v_readlane_b32 s7, v5, {l}"); A("s_min_u32 s4, s4, s6"); A(f"s_max_u32 s5, s5, s7")
        A("s_sub_u32 s5, s5, s4"); A(f"s_mul_i32 s5, s5, {mult}")
        A("s_min_u32 s5, s5, 100000")
        A("s_memrealtime s[8:9]"); A("s_waitcnt lgkmcnt(0)")
        A("L_spin:"); A("s_memrealtime s[10:11]"); A("s_waitcnt lgkmcnt(0)"); A("s_sub_u32 s6, s10, s8"); A("s_cmp_lt_u32 s6, s5"); A("s_cbranch_scc1 L_spin")
        A("L_done3:"); A("s_endpgm")
    A('.section .rodata,"a"'); A(".p2align 6")
    need = max(nv, PM + 36)
    accum = (need + 3) // 4 * 4
    def kd(name, nvg):
        A(f".amdhsa_kernel {name}")
        A(f"  .amdhsa_next_free_vgpr {nvg}"); A("  .amdhsa_next_free_sgpr 80"); A(f"  .amdhsa_accum_offset {nvg}")
        A("  .amdhsa_group_segment_fixed_size 0"); A("  .amdhsa_kernarg_size 72"); A("  .amdhsa_user_sgpr_count 2")
        A("  .amdhsa_user_sgpr_kernarg_segment_ptr 1"); A("  .amdhsa_system_sgpr_workgroup_id_x 1")
        A("  .amdhsa_float_denorm_mode_32 3")
        A(".end_amdhsa_kernel")
    kd(KN, accum)
    if sel >= 0: A(".p2align 6"); kd("diag_kernel", 64)
    return "\n".join(L) + "\n"
if __name__ == "__main__":
    name = sys.argv[1]
    kw = {}
    for x in sys.argv[2:]:
        k, v = x.split("=")
        if k not in ('prof', 'wg', 'steps', 'xr'):
            try: v = int(v)
            except: pass
        if k.endswith("flags") or k.endswith("sc"): v = v.replace("+", " ").replace("none", "")
        kw[k] = v
    open(name, "w").write(gen(**kw))
```

```python
import sys, struct, math
KN = "standalone__tree_speculative_verify_tree_attention_over_candidate_token_tree__decode_kernel"
HEADER = open("standalone__tree_speculative_verify_tree_attention_over_candidate_token_tree__decode.s.ref").read().split("; Override launch geometry")[0]
def f2u(x): return struct.unpack("<I", struct.pack("<f", x))[0]
CEXP = f2u(0.0625 * 1.4426950408889634)

DOC = """
Split-KV decode attention (GQA 2:1), HBM-bound.  256 workgroups, four per (batch, kv-head) pair, 1024 keys each.
Waves 0-3: stream K (scores via MFMA, kept in registers), take the exact wave max, stream V (MFMA with P placed
on a diagonal so V needs no transpose).  About 20 KiB of loads in flight per CU; a wave that finds itself
late among its neighbours keeps a few more loads in flight for a while.
Wave 4: tree token, merge of the four waves through LDS, hand-off between the four workgroups of a pair.
Hand-off: each workgroup marks its d_ws mailbox empty (all ones) at start and takes a ticket in d_debug near
the end; the last ticket combines.  The ticket carries the XCD id: when all four share an XCD the mailbox is
read through that L2 (every word checked against the empty mark), otherwise write-through copy + done count.
"""
def gen(depth=5, slots=16, flags="nt", lds=0, stamp=0, xb=8, dend=8, nend=12,
        wg="22,23,26,21,15,24,25,14", sel=-1, mult=8, ldsc="sc1", comments=1, sat=2, steps="13,17,16,18,19,20", fb=1, cp=200, lag=6, dmax=7, r0=64, a0=7, r1=112, a1=12, xr="5:20", pab=1, pk=1, otouch=0, noearly=0, evb=0, norr=0, dmid=0, mid0=0, mid1=0, prea=6, notree=0, noclr=0, d0=0, n0=0):
    nwg = 256; nstep = 64; nld = 128; n = 256
    wgb = [int(x) for x in wg.split(",")]
    holes = [b for b in wgb if b < 21]
    stepb = [b for b in range(13, 21) if b not in holes]
    if steps:
        st_ = [int(x) for x in steps.split(",")]
        assert sorted(st_) == stepb, (st_, stepb)
        stepb = st_
    assert len(stepb) == 6 and sorted(wgb) == sorted(holes + list(range(21, 27)))
    xl = [tuple(int(y) for y in x.split(":")) for x in xr.split(",")] if xr else []
    assert all(b in stepb for _, b in xl)
    mbit = [wgb.index(h) for h in holes]
    mate = [1 << b for b in mbit]
    def soff(s_): return sum(((s_ >> i) & 1) << b for i, b in enumerate(stepb))
    L = []; A = L.append
    def C(t):
        if comments: A("; " + t)
    LACC = 128
    FLAGS = 0x200000
    REGB = 0x100000
    ldsb = max(lds, LACC + 8192)
    A(HEADER.rstrip())
    if sel >= 0:
        A(f"; @launch kernel={KN} grid=({nwg},1,1) block=(320,1,1) lds={ldsb}")
        A(f"; @launch kernel=diag_kernel grid=(1,1,1) block=(64,1,1) lds=0")
    else:
        A(f"; @launch grid=({nwg},1,1) block=(320,1,1) lds={ldsb}")
    A('.amdgcn_target "amdgcn-amd-amdhsa--gfx950"')
    for t in DOC.strip("\n").split("\n"): C(t)
    A(".text"); A(f".globl {KN}"); A(".p2align 8"); A(f".type {KN},@function"); A(f"{KN}:")
    VOK, VOV, VOQ = 1, 2, 3
    VMASK = 4; VL, VM = 8, 9; VLA, VLM = 10, 11; ACC = 12; VA = 20; VQ = 32; VD = 40; VR = 56
    VS = VR + 4 * slots
    nv = VS + nstep
    assert nv <= 256
    SK, SV, SQ, SX = 12, 16, 20, 28
    def st(i):
        if stamp: A(f"s_memrealtime s[{60+2*i}:{61+2*i}]")
    def basecalc(dst, tmp):
        groups = []; i = 0
        while i < 8:
            j = i
            while j + 1 < 8 and wgb[j + 1] == wgb[j] + 1: j += 1
            groups.append((i, j)); i = j + 1
        for n_, (i, j) in enumerate(groups):
            m = ((1 << (j - i + 1)) - 1) << i
            r = dst if n_ == 0 else tmp
            A(f"s_and_b32 {r}, s2, {m:#x}"); A(f"s_lshl_b32 {r}, {r}, {wgb[i]-i}")
            if n_: A(f"s_or_b32 {dst}, {dst}, {tmp}")
        for i, b in xl:
            A(f"s_and_b32 {tmp}, s2, {1 << i:#x}"); A(f"s_lshl_b32 {tmp}, {tmp}, {b-i}"); A(f"s_xor_b32 {dst}, {dst}, {tmp}")
    st(0)
    C("waves 0-3 stream K then V (256 keys each); wave 4 merges partial results")
    A(f"s_load_dwordx2 s[{SK}:{SK+1}], s[0:1], 8")
    A(f"s_load_dwordx2 s[{SQ}:{SQ+1}], s[0:1], 0")
    A(f"s_load_dwordx2 s[{SV}:{SV+1}], s[0:1], 16")
    A("v_lshrrev_b32 v31, 6, v0")
    A("v_cmp_lt_u32 vcc, 3, v31")
    A(f"s_cmpk_ge_u32 s2, {nwg}"); A("s_cbranch_scc1 L_done")
    C("s47 = byte offset of this workgroup's slice inside k_cache / v_cache (bits 26:21 = (b,hkv) pair)")
    basecalc("s47", "s46")
    A("s_cbranch_vccnz L_helper")
    A("v_and_b32 v28, 3, v0")
    A("v_bfe_u32 v29, v0, 4, 2")
    A("v_lshl_add_u32 v28, v29, 2, v28")
    A("v_lshlrev_b32 v28, 4, v28")
    A("v_bfe_u32 v30, v0, 2, 2")
    A("v_lshl_add_u32 v30, v31, 2, v30")
    A(f"v_lshl_add_u32 v{VOK}, v30, 9, v28")
    A(f"s_brev_b32 s{SK+2}, 16"); A(f"s_mov_b32 s{SK+3}, 0x20000")
    cur = {"issued": 0}; order = []
    def load1():
        i = cur["issued"]; assert i < n
        cur["issued"] = i + 1
        tn = "k" if i < nld else "v"
        s, hf = divmod(i % nld, 2)
        so = "s47" if s == 0 else "s48"
        if hf == 0 and s > 0: A(f"s_xor_b32 s48, s47, {soff(s):#x}")
        r = VR + (i % slots) * 4
        if tn == "k": A(f"buffer_load_dwordx4 v[{r}:{r+3}], v{VOK}, s[{SK}:{SK+3}], {so} offen offset:{256*hf} {flags}")
        else: A(f"buffer_load_dwordx4 v[{r}:{r+3}], v{VOV}, s[{SV}:{SV+3}], {so} offen offset:{256*hf} {flags}")
        order.append(("d", i))
    done = {"pos": -1}
    def isst(op): return op == ("f", 1)
    def emit_wait(N):
        A(f"s_waitcnt vmcnt({N})")
        lds_ = [p for p, op in enumerate(order) if not isst(op)]
        if len(lds_) > N: done["pos"] = max(done["pos"], lds_[len(lds_) - 1 - N])
    def wait_for(op):
        p = order.index(op)
        if p <= done["pos"]: return
        emit_wait(sum(1 for o in order[p + 1:] if not isst(o)))
    def sdep(j):
        if dend and j >= n - nend: return dend
        if dmid and nld + mid0 <= j < nld + mid1: return dmid
        if d0 and 2 * depth <= j < n0: return d0
        return depth
    A("s_waitcnt lgkmcnt(0)")
    st(1)
    for i in range(depth): load1()
    A("v_bfe_u32 v30, v0, 3, 1")
    A(f"v_lshl_add_u32 v{VOQ}, v30, 9, v28")
    A("s_lshr_b32 s7, s47, 21"); A("s_lshl_b32 s7, s7, 10")
    A(f"s_mov_b32 s{SQ+2}, 0x10000"); A(f"s_mov_b32 s{SQ+3}, 0x20000")
    for j in range(2):
        A(f"buffer_load_dwordx4 v[{VQ+4*j}:{VQ+4*j+3}], v{VOQ}, s[{SQ}:{SQ+3}], s7 offen offset:{256*j}")
        order.append(("q", j))
    A(f"s_brev_b32 s{SV+2}, 16"); A(f"s_mov_b32 s{SV+3}, 0x20000")
    if fb:
        A(f"s_load_dwordx2 s[{SX}:{SX+1}], s[0:1], 64")
        A(f"s_mov_b32 s{SX+2}, {FLAGS+0x8000:#x}"); A(f"s_mov_b32 s{SX+3}, 0x20000")
        A("s_and_b32 s50, s2, 7"); A("s_lshl_b32 s50, s50, 12"); A(f"s_add_u32 s50, s50, {FLAGS:#x}")
        A("s_lshr_b32 s51, s2, 3"); A("s_lshl_b32 s51, s51, 2")
    A("v_and_b32 v30, 15, v0")
    A("v_lshl_add_u32 v28, v31, 2, v29")
    A("v_lshlrev_b32 v28, 9, v28")
    A(f"v_lshl_add_u32 v{VOV}, v30, 4, v28")
    A(f"v_lshlrev_b32 v{VLA}, 4, v30")
    A("v_and_b32 v28, 1, v29"); A(f"v_lshl_add_u32 v{VLA}, v28, 10, v{VLA}")
    A("v_lshrrev_b32 v28, 1, v29"); A(f"v_lshl_add_u32 v{VLA}, v28, 9, v{VLA}")
    A(f"v_lshl_add_u32 v{VLA}, v31, 11, v{VLA}")
    A("v_bfe_u32 v28, v0, 3, 1"); A("v_lshl_add_u32 v28, v31, 1, v28"); A(f"v_lshlrev_b32 v{VLM}, 3, v28")
    A(f"v_and_b32 v30, 1, v0"); A("v_lshlrev_b32 v30, 4, v30"); A("v_mov_b32 v31, 0xffff"); A("v_lshlrev_b32 v30, v30, v31")
    A(f"v_bfe_u32 v29, v0, 1, 2")
    for j in range(4):
        A(f"v_cmp_eq_u32 vcc, {j}, v29"); A(f"v_mov_b32 v{ACC+2*j}, 0"); A(f"v_mov_b32 v{ACC+2*j+1}, 0"); A(f"v_cndmask_b32 v{VMASK+j}, 0, v30, vcc")
    A(f"v_mov_b32 v{VL}, 0"); A(f"v_mov_b32 v{VM}, 0xff800000")
    A(f"s_mov_b32 s49, {CEXP:#x}")
    cons = {"c": 0}
    st0 = cp + lag + 1
    def boostable(j): return fb and st0 <= j < n - nend
    def advance(i):
        while True:
            j = cur["issued"]
            mid = fb and cp < j < st0
            ahead = dmax if boostable(j) else (depth + 1 if mid else sdep(j))
            if j >= n or j > i + ahead: break
            assert j - slots < cons["c"], (j, cons)
            if boostable(j):
                A(f"s_cmp_gt_u32 s54, {j - st0}"); A(f"s_cbranch_scc1 L_b{j}")
                A(f"s_waitcnt vmcnt({len(order) - 1 - order.index(('d', j - depth))})")
                A(f"L_b{j}:")
            if mid: emit_wait(len(order) - 1 - order.index(("d", j - depth)))
            wait_for(("d", j - ahead))
            load1()
            if fb and j == cp:
                C("progress check: how many waves of this group passed this point earlier?")
                A(f"buffer_load_ushort v30, v{VOQ}, s[{SX}:{SX+3}], s50 offen nt"); order.append(("f", 0))
                A("s_mov_b64 exec, 1")
                A(f"buffer_store_byte v{VQ+1}, v{VQ}, s[{SX}:{SX+3}], s50 offen"); order.append(("f", 1))
                A("s_mov_b64 exec, -1")
            if fb and j == cp + lag:
                wait_for(("f", 0))
                A("v_cmp_lt_u32 vcc, 0xff, v30"); A("v_and_b32 v30, 0xff, v30"); A("s_bcnt1_i32_b64 s54, vcc")
                A("v_cmp_ne_u32 vcc, 0, v30"); A("s_nop 1"); A("s_bcnt1_i32_b64 s55, vcc"); A("s_add_u32 s54, s54, s55")
                if stamp: A("s_mov_b32 s72, s54")
                A(f"s_sub_i32 s55, s54, {r1}"); A("s_max_i32 s55, s55, 0"); A(f"s_mul_i32 s55, s55, {a1}")
                if evb:
                    A("s_getreg_b32 s56, hwreg(HW_REG_XCC_ID, 0, 1)"); A(f"s_mul_i32 s56, s56, {evb}"); A("s_sub_i32 s54, s54, s56")
                A(f"s_sub_i32 s54, s54, {r0}"); A("s_max_i32 s54, s54, 0"); A(f"s_mul_i32 s54, s54, {a0}")
                A("s_add_u32 s54, s54, s55"); A("s_lshr_b32 s54, s54, 4")
        wait_for(("d", i))
    for i in range(depth):
        wait_for(("d", i))
        if i == 0: st(2)
        load1()
    wait_for(("q", 1))
    def diagop(d, dst, c):
        if c == 0: A(f"v_mov_b32_dpp v{dst}, v{d} quad_perm:[0,0,0,0] row_mask:0xf bank_mask:0xf")
        else: A(f"v_add_f32_dpp v{dst}, v{d+c}, v{dst} quad_perm:[{c},{c},{c},{c}] row_mask:0xf bank_mask:0xf")
    def chain_ops(h):
        for t in range(nstep):
            k = h - (2 * t + 3)
            if 0 <= k < 4: diagop(VD + 4 * (t % 4), VS + t, k)
            if k == 4 and t % 2 == 1: A(f"v_max3_f32 v{VM}, v{VS+t-1}, v{VS+t}, v{VM}")
    C("K phase: per step 4 keys; D[(key,c)][(head,c')] partial dot products, diagonal c==c' summed with DPP")
    for s in range(nstep):
        d = VD + 4 * (s % 4)
        for hf in range(2):
            i = 2 * s + hf
            mark = len(L)
            advance(i)
            r = VR + (i % slots) * 4
            c = "0" if hf == 0 else f"v[{d}:{d+3}]"
            A(f"v_mfma_f32_16x16x32_bf16 v[{d}:{d+3}], v[{r}:{r+3}], v[{VQ+4*hf}:{VQ+4*hf+3}], {c}")
            cons["c"] = i + 1
            if len(L) - mark < 3 or i <= 5: A("s_nop 3")
            chain_ops(i)
    st(3)
    for h in range(2 * nstep, 2 * nstep + 6):
        A("s_nop 2" if h < 2 * nstep + 2 else "s_nop 1")
        chain_ops(h)
    def xrow(reg, op):
        A(f"v_mov_b32 v28, v{reg}"); A("s_nop 1"); A(f"v_permlane32_swap_b32 v{reg}, v28"); A("s_nop 1"); A(f"{op} v{reg}, v{reg}, v28")
        A(f"v_mov_b32 v28, v{reg}"); A("s_nop 1"); A(f"v_permlane16_swap_b32 v{reg}, v28"); A("s_nop 1"); A(f"{op} v{reg}, v{reg}, v28")
    C("wave max per head")
    xrow(VM, "v_max_f32")
    def mkP2(t):
        a, b = VS + t, VS + t + 1
        A(f"v_sub_f32 v28, v{a}, v{VM}"); A(f"v_sub_f32 v29, v{b}, v{VM}")
        A("v_mul_f32 v28, s49, v28"); A("v_mul_f32 v29, s49, v29")
        A("v_exp_f32 v28, v28"); A("v_exp_f32 v29, v29")
        A(f"v_cvt_pk_bf16_f32 v{a}, v28, v28"); A(f"v_add_f32 v{VL}, v{VL}, v28")
        A(f"v_cvt_pk_bf16_f32 v{b}, v29, v29"); A(f"v_add_f32 v{VL}, v{VL}, v29")
    def areg(t): return (VS + 4 * (t - (nstep - prea))) if t >= nstep - prea else VA + 4 * (t % 2)
    def mkA(t):
        a = areg(t)
        for j in range(4): A(f"v_and_b32 v{a+j}, v{VS+t}, v{VMASK+j}")
    C("V phase: A[(head,e)][(key,e')] = P[head][key] * delta(e,e'), B = V rows as loaded")
    mkP2(0); mkA(0); A("s_nop 1")
    for k in range(nstep):
        a = areg(k)
        for hf in range(2):
            i = nld + 2 * k + hf
            advance(i)
            r = VR + (i % slots) * 4
            A(f"v_mfma_f32_16x16x32_bf16 v[{ACC+4*hf}:{ACC+4*hf+3}], v[{a}:{a+3}], v[{r}:{r+3}], v[{ACC+4*hf}:{ACC+4*hf+3}]")
            cons["c"] = i + 1
            if hf == 0 and k + 1 < nstep - prea: mkA(k + 1)
            if prea and hf == 1 and 40 <= k < 40 + prea:
                assert 4 * prea <= 40
                mkA(nstep - prea + k - 40)
            if hf == 1 and 2 * k + 2 < nstep: mkP2(2 * k + 2)
            if hf == 1 and 2 * k + 2 == nstep:
                xrow(VL, "v_add_f32")
                A(f"ds_write2_b32 v{VLM}, v{VM}, v{VL} offset0:0 offset1:1")
            if fb and hf == 0 and k == 2:
                assert cur["issued"] < cp
                A(f"v_and_b32 v{VOQ}, 63, v0"); A(f"v_lshlrev_b32 v{VOQ}, 1, v{VOQ}")
                A(f"v_lshrrev_b32 v{VQ}, 6, v0"); A(f"v_add_u32 v{VQ}, s51, v{VQ}"); A(f"v_mov_b32 v{VQ+1}, 1")
                A("s_waitcnt lgkmcnt(0)")
            if hf == 1 and k == nstep - 1 - xb:
                A("s_waitcnt lgkmcnt(0)"); A("s_barrier")
    st(4)
    A("s_nop 5")
    A(f"ds_write_b128 v{VLA}, v[{ACC}:{ACC+3}] offset:{LACC}")
    A("s_nop 0")
    A(f"ds_write_b128 v{VLA}, v[{ACC+4}:{ACC+7}] offset:{256+LACC}")
    A("s_waitcnt lgkmcnt(0)"); A("s_barrier")
    if stamp:
        A("s_mov_b64 exec, -1")
        st(5); st(7)
        if fb: A("s_mul_i32 s72, s72, 100"); A("s_add_u32 s72, s72, s60")
        else: st(6)
        A(f"s_load_dwordx2 s[{SX}:{SX+1}], s[0:1], 64")
        A("v_lshrrev_b32 v31, 6, v0"); A("s_nop 0"); A("v_readfirstlane_b32 s3, v31")
        A("s_branch L_fin")
    else:
        A("s_endpgm")
    A(".p2align 6")
    A("L_helper:")
    SY, SZ, SO = 32, 36, 40
    A(f"s_load_dwordx2 s[{SX}:{SX+1}], s[0:1], 64")
    A("s_load_dwordx2 s[52:53], s[0:1], 56")
    A(f"s_load_dwordx2 s[{SY}:{SY+1}], s[0:1], 24")
    A(f"s_load_dwordx2 s[{SZ}:{SZ+1}], s[0:1], 32")
    A(f"s_load_dwordx2 s[44:45], s[0:1], 40")
    A(f"s_load_dwordx2 s[{SO}:{SO+1}], s[0:1], 48")
    A("v_and_b32 v1, 63, v0")
    A("v_lshlrev_b32 v4, 4, v1")
    for r in range(4): A(f"v_mov_b32 v{12+r}, -1")
    A(f"s_mov_b32 s{SX+2}, {FLAGS+0x8000:#x}"); A(f"s_mov_b32 s{SX+3}, 0x20000")
    A("s_lshl_b32 s50, s2, 12")
    A("s_lshr_b32 s4, s47, 21")
    A("s_lshr_b32 s27, s4, 4"); A("s_lshl_b32 s27, s27, 2")
    A("s_lshl_b32 s7, s4, 10"); A("s_lshl_b32 s26, s4, 9")
    A("v_and_b32 v5, 0x1f0, v4")
    for d_, nb in ((SQ, 65536), (SY, 32768), (SZ, 32768), (SO, 65536)):
        A(f"s_mov_b32 s{d_+2}, {nb}"); A(f"s_mov_b32 s{d_+3}, 0x20000")
    C("d_debug[pair]: bits 19:0 = four 5-bit fields (16|xcc id), bits 22:20 = arrival ticket, bits 26:24 = done count")
    A("s_getreg_b32 s8, hwreg(HW_REG_XCC_ID, 0, 4)"); A("s_or_b32 s8, s8, 16")
    A(f"s_bfe_u32 s9, s2, {0x10000 | mbit[0]:#x}"); A(f"s_bfe_u32 s10, s2, {0x10000 | mbit[1]:#x}")
    A("s_lshl_b32 s10, s10, 1"); A("s_or_b32 s9, s9, s10")
    A("s_mul_i32 s10, s9, 5"); A("s_lshl_b32 s11, s8, s10"); A("s_or_b32 s10, s11, 0x100000")
    A("s_mul_i32 s8, s8, 0x8421")
    A("s_lshl_b32 s51, s4, 2"); A("v_mov_b32 v8, s51"); A("v_mov_b32 v9, s10")
    A("s_waitcnt lgkmcnt(0)")
    st(1)
    A("s_load_dword s27, s[44:45], s27")
    C("mark own mailbox empty (all ones)")
    A(f"buffer_store_dwordx4 v[12:15], v4, s[{SX}:{SX+3}], s50 offen")
    A(f"buffer_store_dwordx4 v[12:15], v4, s[{SX}:{SX+3}], s50 offen offset:1024")
    A("s_mov_b64 exec, 0xff")
    A(f"buffer_store_dwordx4 v[12:15], v4, s[{SX}:{SX+3}], s50 offen offset:2048")
    if fb:
        A("s_mov_b64 exec, 1")
        A("s_and_b32 s6, s2, 7"); A("s_lshl_b32 s6, s6, 12"); A(f"s_add_u32 s6, s6, {FLAGS:#x}")
        A("s_lshr_b32 s51, s2, 3"); A("s_lshl_b32 s51, s51, 2"); A("s_add_u32 s6, s6, s51")
        A(f"buffer_store_dword v4, v4, s[{SX}:{SX+3}], s6 offen")
    A("s_mov_b64 exec, -1")
    A(f"s_mov_b32 s49, {CEXP:#x}")
    A("v_lshrrev_b32 v7, 5, v1"); A("v_lshlrev_b32 v7, 3, v7")
    VT8 = 32
    A("v_mov_b32 v6, 0xff800000")
    for e in range(8): A(f"v_mov_b32 v{VT8+e}, 0")
    A("s_cmp_lg_u32 s9, 0"); A("s_cbranch_scc1 L_notree")
    if notree: A("s_branch L_notree")
    C("tree token (one workgroup per pair): score + mask bias, value row")
    A(f"buffer_load_dwordx4 v[16:19], v4, s[{SQ}:{SQ+3}], s7 offen")
    A(f"buffer_load_dwordx4 v[20:23], v5, s[{SY}:{SY+3}], s26 offen")
    A(f"buffer_load_dwordx4 v[24:27], v5, s[{SZ}:{SZ+3}], s26 offen")
    A("s_waitcnt vmcnt(0) lgkmcnt(0)")
    A("v_mov_b32 v6, 0")
    for j in range(4):
        A(f"v_lshlrev_b32 v28, 16, v{16+j}"); A(f"v_lshlrev_b32 v29, 16, v{20+j}"); A("v_fmac_f32 v6, v28, v29")
        A(f"v_and_b32 v28, 0xffff0000, v{16+j}"); A(f"v_and_b32 v29, 0xffff0000, v{20+j}"); A("v_fmac_f32 v6, v28, v29")
    for s_ in (8, 4, 2, 1):
        A("s_nop 1"); A(f"v_add_f32_dpp v6, v6, v6 row_ror:{s_} row_mask:0xf bank_mask:0xf")
    A("v_mov_b32 v28, v6"); A("s_nop 1"); A("v_permlane16_swap_b32 v6, v28"); A("s_nop 1"); A("v_add_f32 v6, v6, v28")
    A("s_bitcmp1_b32 s4, 3")
    A("s_cselect_b32 s51, 0, 16"); A("s_lshl_b32 s27, s27, s51"); A("s_and_b32 s27, s27, 0xffff0000")
    A("v_mov_b32 v29, s27"); A("v_sub_f32 v29, 1.0, v29")
    A(f"v_mul_f32 v29, {f2u(-1.6e10):#x}, v29")
    A("v_add_f32 v6, v6, v29")
    for j in range(4):
        A(f"v_lshlrev_b32 v{VT8+2*j}, 16, v{24+j}"); A(f"v_and_b32 v{VT8+2*j+1}, 0xffff0000, v{24+j}")
    A("L_notree:")
    A("s_mov_b32 s56, -2")
    for j, mk_ in enumerate((mate[0], mate[1], mate[0] | mate[1])):
        A(f"s_xor_b32 s{57+j}, s50, {mk_ << 12:#x}")
    A("s_mov_b32 s5, 0x100000")
    A("s_waitcnt vmcnt(0) lgkmcnt(0)")
    if sat:
        A("s_lshl_b32 s6, s4, 2")
    if sat == 1:
        A("s_mov_b32 s10, s11")
        A("s_atomic_add s10, s[52:53], s6 glc")
        A("s_waitcnt lgkmcnt(0)")
        A("s_mov_b32 s10, 0x100000")
    st(2)
    A("s_barrier")
    st(3)
    C("near the end of the stream: take a ticket; the last of the four workgroups combines")
    MW = 40
    if not sat:
        A("s_mov_b64 exec, 1")
        A("global_atomic_add v9, v8, v9, s[52:53] sc0")
        A("s_mov_b64 exec, -1")
    for w in range(4): A(f"ds_read_b64 v[{MW+2*w}:{MW+2*w+1}], v7 offset:{16*w}")
    A("s_waitcnt lgkmcnt(0)")
    if sat: A("s_atomic_add s10, s[52:53], s6 glc")
    A(f"v_max3_f32 v10, v{MW}, v{MW+2}, v{MW+4}"); A(f"v_max3_f32 v10, v10, v{MW+6}, v6")
    for w in range(4): A(f"v_sub_f32 v{48+w}, v{MW+2*w}, v10")
    A("v_sub_f32 v52, v6, v10")
    for w in range(5): A(f"v_mul_f32 v{48+w}, s49, v{48+w}")
    for w in range(5): A(f"v_exp_f32 v{48+w}, v{48+w}")
    A("s_nop 0")
    A(f"v_fma_f32 v11, v48, v{MW+1}, v52")
    for w in range(1, 4): A(f"v_fmac_f32 v11, v{48+w}, v{MW+2*w+1}")
    O = 12
    A("v_min_u32 v10, s56, v10"); A("v_min_u32 v11, s56, v11")
    A("s_mov_b32 exec_lo, 1"); A("s_mov_b32 exec_hi, 1")
    A(f"buffer_store_dwordx2 v[10:11], v7, s[{SX}:{SX+3}], s50 offen offset:2048")
    A("s_mov_b64 exec, -1")
    for e in range(8): A(f"v_mul_f32 v{O+e}, v52, v{VT8+e}")
    if sat:
        A("s_waitcnt lgkmcnt(0)"); A("s_mov_b32 s51, s10")
    else:
        A("s_waitcnt vmcnt(0)")
        A("v_readfirstlane_b32 s51, v9")
    st(4)
    A("s_and_b32 s10, s51, 0xfffff"); A("s_or_b32 s10, s10, s11")
    A("s_and_b32 s51, s51, 0xfcf00000")
    A("s_cmp_eq_u32 s51, 0x300000"); A("s_cbranch_scc1 L_last")
    RD = 64
    def fma8(c, src):
        if pk:
            sel = "op_sel_hi:[0,1,1]" if c % 2 == 0 else "op_sel:[1,0,0] op_sel_hi:[1,1,1]"
            cb = c & ~1
            for e in range(0, 8, 2): A(f"v_pk_fma_f32 v[{O+e}:{O+e+1}], v[{cb}:{cb+1}], v[{src+e}:{src+e+1}], v[{O+e}:{O+e+1}] {sel}")
        else:
            for e in range(8): A(f"v_fmac_f32 v{O+e}, v{c}, v{src+e}")
    def ownmerge():
        for w in range(4):
            A(f"ds_read_b128 v[{RD+8*w}:{RD+8*w+3}], v4 offset:{LACC+2048*w}")
            A(f"ds_read_b128 v[{RD+8*w+4}:{RD+8*w+7}], v4 offset:{LACC+2048*w+1024}")
        for w in range(4):
            A(f"s_waitcnt lgkmcnt({6-2*w})")
            fma8(48 + w, RD + 8 * w)
    C("producer")
    A("s_barrier")
    st(5)
    ownmerge()
    for e in range(4): A(f"v_min_u32 v{O+e}, s56, v{O+e}")
    A(f"buffer_store_dwordx4 v[{O}:{O+3}], v4, s[{SX}:{SX+3}], s50 offen")
    for e in range(4, 8): A(f"v_min_u32 v{O+e}, s56, v{O+e}")
    A(f"buffer_store_dwordx4 v[{O+4}:{O+7}], v4, s[{SX}:{SX+3}], s50 offen offset:1024")
    st(6)
    if norr: A("s_mov_b32 s10, s8")
    elif sat == 2:
        A("s_mov_b32 s10, 0"); A("s_atomic_add s10, s[52:53], s6 glc"); A("s_waitcnt lgkmcnt(0)")
        A("s_and_b32 s10, s10, 0xfffff")
    elif sat == 0:
        A("global_load_dword v28, v8, s[52:53] sc1")
        A("s_waitcnt vmcnt(0)")
        A("v_readfirstlane_b32 s10, v28")
        A("s_and_b32 s10, s10, 0xfffff")
    A("s_cmp_eq_u32 s10, s8"); A("s_cbranch_scc1 " + ("L_pfin" if stamp else "L_done"))
    C("not known to share one XCD: publish write-through, then count as done")
    A(f"s_add_u32 s50, s50, {REGB:#x}")
    A(f"buffer_store_dwordx4 v[{O}:{O+3}], v4, s[{SX}:{SX+3}], s50 offen sc1")
    A(f"buffer_store_dwordx4 v[{O+4}:{O+7}], v4, s[{SX}:{SX+3}], s50 offen offset:1024 sc1")
    A("s_mov_b32 exec_lo, 1"); A("s_mov_b32 exec_hi, 1")
    A(f"buffer_store_dwordx2 v[10:11], v7, s[{SX}:{SX+3}], s50 offen offset:2048 sc1")
    A("s_mov_b64 exec, 1")
    A("v_mov_b32 v9, 0x1000000")
    A("s_waitcnt vmcnt(0)")
    A("global_atomic_add v8, v9, s[52:53]")
    if stamp:
        A("s_mov_b64 exec, -1")
        A("L_pfin:"); A("s_waitcnt vmcnt(0)"); st(7); A("s_branch L_hfin")
    else: A("s_endpgm")
    PM = 96
    def pollO():
        for j in range(3):
            b = PM + 12 * j
            A(f"buffer_load_dwordx4 v[{b}:{b+3}], v4, s[{SX}:{SX+3}], s{57+j} offen {ldsc}")
            A(f"buffer_load_dwordx4 v[{b+4}:{b+7}], v4, s[{SX}:{SX+3}], s{57+j} offen offset:1024 {ldsc}")
    def checkO():
        for j in range(3):
            b = PM + 12 * j
            A(f"s_waitcnt vmcnt({4-2*j})")
            for e in range(0, 8, 2):
                if j == 0 and e == 0: A(f"v_max_u32 v28, v{b}, v{b+1}")
                else: A(f"v_max3_u32 v28, v{b+e}, v{b+e+1}, v28")
        A("v_cmp_eq_u32 vcc, -1, v28")
    def accO():
        for j in range(3):
            fma8(53 + j, PM + 12 * j)
    A("L_last:")
    A("s_cmp_eq_u32 s10, s8"); A("s_cbranch_scc1 L_comb")
    C("different XCDs: wait for the three done marks, then read the write-through copies")
    A("L_wait:")
    A("global_load_dword v28, v8, s[52:53] sc1")
    A("s_waitcnt vmcnt(0)")
    A("v_readfirstlane_b32 s51, v28")
    A("s_sub_u32 s5, s5, 1"); A("s_cbranch_scc1 L_wend")
    A("s_bfe_u32 s51, s51, 0x30018")
    A("s_cmp_lg_u32 s51, 3"); A("s_cbranch_scc1 L_wait")
    A("L_wend:")
    for j in range(3): A(f"s_add_u32 s{57+j}, s{57+j}, {REGB:#x}")
    A("s_mov_b32 s5, 0x100000")
    A("L_comb:")
    for j in range(3):
        b = PM + 12 * j
        A(f"buffer_load_dwordx2 v[{b+8}:{b+9}], v7, s[{SX}:{SX+3}], s{57+j} offen offset:2048 {ldsc}")
    if otouch:
        A("s_mov_b64 exec, 1"); A(f"buffer_load_dword v31, v4, s[{SO}:{SO+3}], s7 offen"); A("s_mov_b64 exec, -1")
    if not noearly: pollO()
    A(f"s_waitcnt vmcnt({(0 if noearly else 6) + (1 if otouch else 0)})")
    A(f"v_max3_u32 v28, v{PM+8}, v{PM+9}, v{PM+20}"); A(f"v_max3_u32 v28, v{PM+21}, v{PM+32}, v28"); A(f"v_max_u32 v28, v{PM+33}, v28")
    A("v_cmp_eq_u32 vcc, -1, v28")
    A("s_sub_u32 s5, s5, 1")
    A("s_cbranch_scc1 L_mlok")
    A("s_cbranch_vccnz L_comb")
    A("L_mlok:")
    A(f"v_max3_f32 v28, v10, v{PM+8}, v{PM+20}"); A(f"v_max_f32 v28, v28, v{PM+32}")
    A("v_sub_f32 v52, v10, v28")
    for j in range(3): A(f"v_sub_f32 v{53+j}, v{PM+12*j+8}, v28")
    for j in range(4): A(f"v_mul_f32 v{52+j}, s49, v{52+j}")
    for j in range(4): A(f"v_exp_f32 v{52+j}, v{52+j}")
    A("v_mul_f32 v29, v52, v11")
    for j in range(3): A(f"v_fmac_f32 v29, v{53+j}, v{PM+12*j+9}")
    A("v_rcp_f32 v29, v29"); A("s_nop 0")
    for j in range(4): A(f"v_mul_f32 v{52+j}, v{52+j}, v29")
    for w in range(4): A(f"v_mul_f32 v{48+w}, v{48+w}, v52")
    for e in range(8): A(f"v_mul_f32 v{O+e}, v52, v{O+e}")
    A("s_mov_b32 s5, 0x100000")
    if not noearly:
        checkO()
        A("s_cbranch_vccnz L_late")
        A("L_early:")
        st(5)
        accO()
        A("s_barrier")
        st(6)
        ownmerge()
        A("s_branch L_out")
    A("L_late:")
    if pab: A("s_barrier"); pollO()
    else: pollO(); A("s_barrier")
    st(6)
    ownmerge()
    A("L_poll:")
    checkO()
    A("s_cbranch_vccz L_got")
    pollO()
    A("s_sub_u32 s5, s5, 1")
    A("s_cbranch_scc0 L_poll")
    A("s_waitcnt vmcnt(0)")
    A("L_got:")
    st(5)
    accO()
    A("L_out:")
    for e in range(4): A(f"v_cvt_pk_bf16_f32 v{24+e}, v{O+2*e}, v{O+2*e+1}")
    A(f"buffer_store_dwordx4 v[24:27], v4, s[{SO}:{SO+3}], s7 offen")
    if stamp:
        A("s_waitcnt vmcnt(0)"); st(7)
        A("L_hfin:")
        A("s_mov_b32 s3, 4")
        A("L_fin:")
        A("s_waitcnt lgkmcnt(0)")
        A(f"s_mov_b32 s{SX+2}, 0x20000000"); A(f"s_mov_b32 s{SX+3}, 0x20000")
        A(f"s_mul_i32 s51, s2, 5"); A("s_add_u32 s51, s51, s3"); A("s_lshl_b32 s51, s51, 5"); A("s_add_u32 s51, s51, 0x1000000")
        for i in range(8): A(f"v_mov_b32 v{32+i}, s{60+2*i}")
        A("v_mov_b32 v31, 0"); A("s_mov_b64 exec, 1")
        A(f"buffer_store_dwordx4 v[32:35], v31, s[{SX}:{SX+3}], s51 offen")
        A(f"buffer_store_dwordx4 v[36:39], v31, s[{SX}:{SX+3}], s51 offen offset:16")
    A("L_done:"); A("s_endpgm")
    if sel >= 0:
        per = 20
        A(".globl diag_kernel"); A(".p2align 8"); A(".type diag_kernel,@function"); A("diag_kernel:")
        A("s_cmp_ge_u32 s2, 1"); A("s_cbranch_scc1 L_done3")
        A("s_load_dwordx2 s[28:29], s[0:1], 64")
        A("v_lshlrev_b32 v1, 5, v0")
        A("s_mov_b32 s30, 0x20000000"); A("s_mov_b32 s31, 0x20000")
        A("s_waitcnt lgkmcnt(0)")
        A("s_mov_b32 s51, 0x1000000")
        for i in range(per):
            A(f"buffer_load_dword v{4+2*i}, v1, s[28:31], s51 offen")
            A(f"buffer_load_dword v{5+2*i}, v1, s[28:31], s51 offen offset:{4*sel}")
            A("s_add_u32 s51, s51, 2048")
        A("s_waitcnt vmcnt(0)")
        for i in range(1, per):
            A(f"v_min_u32 v4, v4, v{4+2*i}"); A(f"v_max_u32 v5, v5, v{5+2*i}")
        A("s_nop 1")
        A("v_readlane_b32 s4, v4, 0"); A("v_readlane_b32 s5, v5, 0")
        for l in range(1, 64):
            A(f"v_readlane_b32 s6, v4, {l}"); A(f"v_readlane_b32 s7, v5, {l}"); A("s_min_u32 s4, s4, s6"); A(f"s_max_u32 s5, s5, s7")
        A("s_sub_u32 s5, s5, s4"); A(f"s_mul_i32 s5, s5, {mult}")
        A("s_min_u32 s5, s5, 100000")
        A("s_memrealtime s[8:9]"); A("s_waitcnt lgkmcnt(0)")
        A("L_spin:"); A("s_memrealtime s[10:11]"); A("s_waitcnt lgkmcnt(0)"); A("s_sub_u32 s6, s10, s8"); A("s_cmp_lt_u32 s6, s5"); A("s_cbranch_scc1 L_spin")
        A("L_done3:"); A("s_endpgm")
    A('.section .rodata,"a"'); A(".p2align 6")
    need = max(nv, PM + 36)
    accum = (need + 3) // 4 * 4
    def kd(name, nvg):
        A(f".amdhsa_kernel {name}")
        A(f"  .amdhsa_next_free_vgpr {nvg}"); A("  .amdhsa_next_free_sgpr 80"); A(f"  .amdhsa_accum_offset {nvg}")
        A("  .amdhsa_group_segment_fixed_size 0"); A("  .amdhsa_kernarg_size 72"); A("  .amdhsa_user_sgpr_count 2")
        A("  .amdhsa_user_sgpr_kernarg_segment_ptr 1"); A("  .amdhsa_system_sgpr_workgroup_id_x 1")
        A("  .amdhsa_float_denorm_mode_32 3")
        A(".end_amdhsa_kernel")
    kd(KN, accum)
    if sel >= 0: A(".p2align 6"); kd("diag_kernel", 64)
    return "\n".join(L) + "\n"
if __name__ == "__main__":
    name = sys.argv[1]
    kw = {}
    for x in sys.argv[2:]:
        k, v = x.split("=")
        if k not in ('prof', 'wg', 'steps', 'xr'):
            try: v = int(v)
            except: pass
        if k.endswith("flags") or k.endswith("sc"): v = v.replace("+", " ").replace("none", "")
        kw[k] = v
    open(name, "w").write(gen(**kw))
```

```python
import sys, struct, math
KN = "standalone__tree_speculative_verify_tree_attention_over_candidate_token_tree__decode_kernel"
HEADER = open("standalone__tree_speculative_verify_tree_attention_over_candidate_token_tree__decode.s.ref").read().split("; Override launch geometry")[0]
def f2u(x): return struct.unpack("<I", struct.pack("<f", x))[0]
CEXP = f2u(0.0625 * 1.4426950408889634)

DOC = """
Split-KV decode attention (GQA 2:1), HBM-bound.  256 workgroups, four per (batch, kv-head) pair, 1024 keys each.
Waves 0-3: stream K (scores via MFMA, kept in registers), take the exact wave max, stream V (MFMA with P placed
on a diagonal so V needs no transpose).  About 20 KiB of loads in flight per CU; a wave that finds itself
late among its neighbours keeps a few more loads in flight for a while.
Wave 4: tree token, merge of the four waves through LDS, hand-off between the four workgroups of a pair.
Hand-off: each workgroup marks its d_ws mailbox empty (all ones) at start and takes a ticket in d_debug near
the end; the last ticket combines.  The ticket carries the XCD id: when all four share an XCD the mailbox is
read through that L2 (every word checked against the empty mark), otherwise write-through copy + done count.
"""
def gen(depth=5, slots=16, flags="nt", lds=0, stamp=0, xb=8, dend=8, nend=12,
        wg="26,22,23,24,25,15,19,21", sel=-1, mult=8, ldsc="sc1", comments=1, sat=2, steps="13,14,16,17,18,20", fb=1, cp=200, lag=6, dmax=7, r0=64, a0=7, r1=112, a1=12, xr="1:14,2:18,6:20", pab=1, pk=1, otouch=0, noearly=0, evb=0, norr=0, dmid=0, mid0=0, mid1=0, prea=6, notree=0, noclr=0, d0=0, n0=0):
    nwg = 256; nstep = 64; nld = 128; n = 256
    wgb = [int(x) for x in wg.split(",")]
    holes = [b for b in wgb if b < 21]
    stepb = [b for b in range(13, 21) if b not in holes]
    if steps:
        st_ = [int(x) for x in steps.split(",")]
        assert sorted(st_) == stepb, (st_, stepb)
        stepb = st_
    assert len(stepb) == 6 and sorted(wgb) == sorted(holes + list(range(21, 27)))
    xl = [tuple(int(y) for y in x.split(":")) for x in xr.split(",")] if xr else []
    assert all(b in stepb for _, b in xl)
    mbit = [wgb.index(h) for h in holes]
    mate = [1 << b for b in mbit]
    def soff(s_): return sum(((s_ >> i) & 1) << b for i, b in enumerate(stepb))
    L = []; A = L.append
    def C(t):
        if comments: A("; " + t)
    LACC = 128
    FLAGS = 0x200000
    REGB = 0x100000
    ldsb = max(lds, LACC + 8192)
    A(HEADER.rstrip())
    if sel >= 0:
        A(f"; @launch kernel={KN} grid=({nwg},1,1) block=(320,1,1) lds={ldsb}")
        A(f"; @launch kernel=diag_kernel grid=(1,1,1) block=(64,1,1) lds=0")
    else:
        A(f"; @launch grid=({nwg},1,1) block=(320,1,1) lds={ldsb}")
    A('.amdgcn_target "amdgcn-amd-amdhsa--gfx950"')
    for t in DOC.strip("\n").split("\n"): C(t)
    A(".text"); A(f".globl {KN}"); A(".p2align 8"); A(f".type {KN},@function"); A(f"{KN}:")
    VOK, VOV, VOQ = 1, 2, 3
    VMASK = 4; VL, VM = 8, 9; VLA, VLM = 10, 11; ACC = 12; VA = 20; VQ = 32; VD = 40; VR = 56
    VS = VR + 4 * slots
    nv = VS + nstep
    assert nv <= 256
    SK, SV, SQ, SX = 12, 16, 20, 28
    def st(i):
        if stamp: A(f"s_memrealtime s[{60+2*i}:{61+2*i}]")
    def basecalc(dst, tmp):
        bysh = {}
        for i, b_ in list(enumerate(wgb)) + xl: bysh[b_ - i] = bysh.get(b_ - i, 0) | (1 << i)
        for n_, (sh_, m) in enumerate(sorted(bysh.items())):
            r = dst if n_ == 0 else tmp
            A(f"s_and_b32 {r}, s2, {m:#x}"); A(f"s_lshl_b32 {r}, {r}, {sh_}")
            if n_: A(f"s_xor_b32 {dst}, {dst}, {tmp}")
    st(0)
    C("waves 0-3 stream K then V (256 keys each); wave 4 merges partial results")
    A(f"s_load_dwordx2 s[{SK}:{SK+1}], s[0:1], 8")
    A(f"s_load_dwordx2 s[{SQ}:{SQ+1}], s[0:1], 0")
    A(f"s_load_dwordx2 s[{SV}:{SV+1}], s[0:1], 16")
    A("v_lshrrev_b32 v31, 6, v0")
    A("v_cmp_lt_u32 vcc, 3, v31")
    A(f"s_cmpk_ge_u32 s2, {nwg}"); A("s_cbranch_scc1 L_done")
    C("s47 = byte offset of this workgroup's slice inside k_cache / v_cache (bits 26:21 = (b,hkv) pair)")
    basecalc("s47", "s46")
    A("s_cbranch_vccnz L_helper")
    A("v_and_b32 v28, 3, v0")
    A("v_bfe_u32 v29, v0, 4, 2")
    A("v_lshl_add_u32 v28, v29, 2, v28")
    A("v_lshlrev_b32 v28, 4, v28")
    A("v_bfe_u32 v30, v0, 2, 2")
    A("v_lshl_add_u32 v30, v31, 2, v30")
    A(f"v_lshl_add_u32 v{VOK}, v30, 9, v28")
    A(f"s_brev_b32 s{SK+2}, 16"); A(f"s_mov_b32 s{SK+3}, 0x20000")
    cur = {"issued": 0}; order = []
    def load1():
        i = cur["issued"]; assert i < n
        cur["issued"] = i + 1
        tn = "k" if i < nld else "v"
        s, hf = divmod(i % nld, 2)
        so = "s47" if s == 0 else "s48"
        if hf == 0 and s > 0: A(f"s_xor_b32 s48, s47, {soff(s):#x}")
        r = VR + (i % slots) * 4
        if tn == "k": A(f"buffer_load_dwordx4 v[{r}:{r+3}], v{VOK}, s[{SK}:{SK+3}], {so} offen offset:{256*hf} {flags}")
        else: A(f"buffer_load_dwordx4 v[{r}:{r+3}], v{VOV}, s[{SV}:{SV+3}], {so} offen offset:{256*hf} {flags}")
        order.append(("d", i))
    done = {"pos": -1}
    def isst(op): return op == ("f", 1)
    def emit_wait(N):
        A(f"s_waitcnt vmcnt({N})")
        lds_ = [p for p, op in enumerate(order) if not isst(op)]
        if len(lds_) > N: done["pos"] = max(done["pos"], lds_[len(lds_) - 1 - N])
    def wait_for(op):
        p = order.index(op)
        if p <= done["pos"]: return
        emit_wait(sum(1 for o in order[p + 1:] if not isst(o)))
    def sdep(j):
        if dend and j >= n - nend: return dend
        if dmid and nld + mid0 <= j < nld + mid1: return dmid
        if d0 and 2 * depth <= j < n0: return d0
        return depth
    A("s_waitcnt lgkmcnt(0)")
    st(1)
    for i in range(depth): load1()
    A("v_bfe_u32 v30, v0, 3, 1")
    A(f"v_lshl_add_u32 v{VOQ}, v30, 9, v28")
    A("s_lshr_b32 s7, s47, 21"); A("s_lshl_b32 s7, s7, 10")
    A(f"s_mov_b32 s{SQ+2}, 0x10000"); A(f"s_mov_b32 s{SQ+3}, 0x20000")
    for j in range(2):
        A(f"buffer_load_dwordx4 v[{VQ+4*j}:{VQ+4*j+3}], v{VOQ}, s[{SQ}:{SQ+3}], s7 offen offset:{256*j}")
        order.append(("q", j))
    A(f"s_brev_b32 s{SV+2}, 16"); A(f"s_mov_b32 s{SV+3}, 0x20000")
    if fb:
        A(f"s_load_dwordx2 s[{SX}:{SX+1}], s[0:1], 64")
        A(f"s_mov_b32 s{SX+2}, {FLAGS+0x8000:#x}"); A(f"s_mov_b32 s{SX+3}, 0x20000")
        A("s_and_b32 s50, s2, 7"); A("s_lshl_b32 s50, s50, 12"); A(f"s_add_u32 s50, s50, {FLAGS:#x}")
        A("s_lshr_b32 s51, s2, 3"); A("s_lshl_b32 s51, s51, 2")
    A("v_and_b32 v30, 15, v0")
    A("v_lshl_add_u32 v28, v31, 2, v29")
    A("v_lshlrev_b32 v28, 9, v28")
    A(f"v_lshl_add_u32 v{VOV}, v30, 4, v28")
    A(f"v_lshlrev_b32 v{VLA}, 4, v30")
    A("v_and_b32 v28, 1, v29"); A(f"v_lshl_add_u32 v{VLA}, v28, 10, v{VLA}")
    A("v_lshrrev_b32 v28, 1, v29"); A(f"v_lshl_add_u32 v{VLA}, v28, 9, v{VLA}")
    A(f"v_lshl_add_u32 v{VLA}, v31, 11, v{VLA}")
    A("v_bfe_u32 v28, v0, 3, 1"); A("v_lshl_add_u32 v28, v31, 1, v28"); A(f"v_lshlrev_b32 v{VLM}, 3, v28")
    A(f"v_and_b32 v30, 1, v0"); A("v_lshlrev_b32 v30, 4, v30"); A("v_mov_b32 v31, 0xffff"); A("v_lshlrev_b32 v30, v30, v31")
    A(f"v_bfe_u32 v29, v0, 1, 2")
    for j in range(4):
        A(f"v_cmp_eq_u32 vcc, {j}, v29"); A(f"v_mov_b32 v{ACC+2*j}, 0"); A(f"v_mov_b32 v{ACC+2*j+1}, 0"); A(f"v_cndmask_b32 v{VMASK+j}, 0, v30, vcc")
    A(f"v_mov_b32 v{VL}, 0"); A(f"v_mov_b32 v{VM}, 0xff800000")
    A(f"s_mov_b32 s49, {CEXP:#x}")
    cons = {"c": 0}
    st0 = cp + lag + 1
    def boostable(j): return fb and st0 <= j < n - nend
    def advance(i):
        while True:
            j = cur["issued"]
            mid = fb and cp < j < st0
            ahead = dmax if boostable(j) else (depth + 1 if mid else sdep(j))
            if j >= n or j > i + ahead: break
            assert j - slots < cons["c"], (j, cons)
            if boostable(j):
                A(f"s_cmp_gt_u32 s54, {j - st0}"); A(f"s_cbranch_scc1 L_b{j}")
                A(f"s_waitcnt vmcnt({len(order) - 1 - order.index(('d', j - depth))})")
                A(f"L_b{j}:")
            if mid: emit_wait(len(order) - 1 - order.index(("d", j - depth)))
            wait_for(("d", j - ahead))
            load1()
            if fb and j == cp:
                C("progress check: how many waves of this group passed this point earlier?")
                A(f"buffer_load_ushort v30, v{VOQ}, s[{SX}:{SX+3}], s50 offen nt"); order.append(("f", 0))
                A("s_mov_b64 exec, 1")
                A(f"buffer_store_byte v{VQ+1}, v{VQ}, s[{SX}:{SX+3}], s50 offen"); order.append(("f", 1))
                A("s_mov_b64 exec, -1")
            if fb and j == cp + lag:
                wait_for(("f", 0))
                A("v_cmp_lt_u32 vcc, 0xff, v30"); A("v_and_b32 v30, 0xff, v30"); A("s_bcnt1_i32_b64 s54, vcc")
                A("v_cmp_ne_u32 vcc, 0, v30"); A("s_nop 1"); A("s_bcnt1_i32_b64 s55, vcc"); A("s_add_u32 s54, s54, s55")
                if stamp: A("s_mov_b32 s72, s54")
                A(f"s_sub_i32 s55, s54, {r1}"); A("s_max_i32 s55, s55, 0"); A(f"s_mul_i32 s55, s55, {a1}")
                if evb:
                    A("s_getreg_b32 s56, hwreg(HW_REG_XCC_ID, 0, 1)"); A(f"s_mul_i32 s56, s56, {evb}"); A("s_sub_i32 s54, s54, s56")
                A(f"s_sub_i32 s54, s54, {r0}"); A("s_max_i32 s54, s54, 0"); A(f"s_mul_i32 s54, s54, {a0}")
                A("s_add_u32 s54, s54, s55"); A("s_lshr_b32 s54, s54, 4")
        wait_for(("d", i))
    for i in range(depth):
        wait_for(("d", i))
        if i == 0: st(2)
        load1()
    wait_for(("q", 1))
    def diagop(d, dst, c):
        if c == 0: A(f"v_mov_b32_dpp v{dst}, v{d} quad_perm:[0,0,0,0] row_mask:0xf bank_mask:0xf")
        else: A(f"v_add_f32_dpp v{dst}, v{d+c}, v{dst} quad_perm:[{c},{c},{c},{c}] row_mask:0xf bank_mask:0xf")
    def chain_ops(h):
        for t in range(nstep):
            k = h - (2 * t + 3)
            if 0 <= k < 4: diagop(VD + 4 * (t % 4), VS + t, k)
            if k == 4 and t % 2 == 1: A(f"v_max3_f32 v{VM}, v{VS+t-1}, v{VS+t}, v{VM}")
    C("K phase: per step 4 keys; D[(key,c)][(head,c')] partial dot products, diagonal c==c' summed with DPP")
    for s in range(nstep):
        d = VD + 4 * (s % 4)
        for hf in range(2):
            i = 2 * s + hf
            mark = len(L)
            advance(i)
            r = VR + (i % slots) * 4
            c = "0" if hf == 0 else f"v[{d}:{d+3}]"
            A(f"v_mfma_f32_16x16x32_bf16 v[{d}:{d+3}], v[{r}:{r+3}], v[{VQ+4*hf}:{VQ+4*hf+3}], {c}")
            cons["c"] = i + 1
            if len(L) - mark < 3 or i <= 5: A("s_nop 3")
            chain_ops(i)
    st(3)
    for h in range(2 * nstep, 2 * nstep + 6):
        A("s_nop 2" if h < 2 * nstep + 2 else "s_nop 1")
        chain_ops(h)
    def xrow(reg, op):
        A(f"v_mov_b32 v28, v{reg}"); A("s_nop 1"); A(f"v_permlane32_swap_b32 v{reg}, v28"); A("s_nop 1"); A(f"{op} v{reg}, v{reg}, v28")
        A(f"v_mov_b32 v28, v{reg}"); A("s_nop 1"); A(f"v_permlane16_swap_b32 v{reg}, v28"); A("s_nop 1"); A(f"{op} v{reg}, v{reg}, v28")
    C("wave max per head")
    xrow(VM, "v_max_f32")
    def mkP2(t):
        a, b = VS + t, VS + t + 1
        A(f"v_sub_f32 v28, v{a}, v{VM}"); A(f"v_sub_f32 v29, v{b}, v{VM}")
        A("v_mul_f32 v28, s49, v28"); A("v_mul_f32 v29, s49, v29")
        A("v_exp_f32 v28, v28"); A("v_exp_f32 v29, v29")
        A(f"v_cvt_pk_bf16_f32 v{a}, v28, v28"); A(f"v_add_f32 v{VL}, v{VL}, v28")
        A(f"v_cvt_pk_bf16_f32 v{b}, v29, v29"); A(f"v_add_f32 v{VL}, v{VL}, v29")
    def areg(t): return (VS + 4 * (t - (nstep - prea))) if t >= nstep - prea else VA + 4 * (t % 2)
    def mkA(t):
        a = areg(t)
        for j in range(4): A(f"v_and_b32 v{a+j}, v{VS+t}, v{VMASK+j}")
    C("V phase: A[(head,e)][(key,e')] = P[head][key] * delta(e,e'), B = V rows as loaded")
    mkP2(0); mkA(0); A("s_nop 1")
    for k in range(nstep):
        a = areg(k)
        for hf in range(2):
            i = nld + 2 * k + hf
            advance(i)
            r = VR + (i % slots) * 4
            A(f"v_mfma_f32_16x16x32_bf16 v[{ACC+4*hf}:{ACC+4*hf+3}], v[{a}:{a+3}], v[{r}:{r+3}], v[{ACC+4*hf}:{ACC+4*hf+3}]")
            cons["c"] = i + 1
            if hf == 0 and k + 1 < nstep - prea: mkA(k + 1)
            if prea and hf == 1 and 40 <= k < 40 + prea:
                assert 4 * prea <= 40
                mkA(nstep - prea + k - 40)
            if hf == 1 and 2 * k + 2 < nstep: mkP2(2 * k + 2)
            if hf == 1 and 2 * k + 2 == nstep:
                xrow(VL, "v_add_f32")
                A(f"ds_write2_b32 v{VLM}, v{VM}, v{VL} offset0:0 offset1:1")
            if fb and hf == 0 and k == 2:
                assert cur["issued"] < cp
                A(f"v_and_b32 v{VOQ}, 63, v0"); A(f"v_lshlrev_b32 v{VOQ}, 1, v{VOQ}")
                A(f"v_lshrrev_b32 v{VQ}, 6, v0"); A(f"v_add_u32 v{VQ}, s51, v{VQ}"); A(f"v_mov_b32 v{VQ+1}, 1")
                A("s_waitcnt lgkmcnt(0)")
            if hf == 1 and k == nstep - 1 - xb:
                A("s_waitcnt lgkmcnt(0)"); A("s_barrier")
    st(4)
    A("s_nop 5")
    A(f"ds_write_b128 v{VLA}, v[{ACC}:{ACC+3}] offset:{LACC}")
    A("s_nop 0")
    A(f"ds_write_b128 v{VLA}, v[{ACC+4}:{ACC+7}] offset:{256+LACC}")
    A("s_waitcnt lgkmcnt(0)"); A("s_barrier")
    if stamp:
        A("s_mov_b64 exec, -1")
        st(5); st(7)
        if fb: A("s_mul_i32 s72, s72, 100"); A("s_add_u32 s72, s72, s60")
        else: st(6)
        A(f"s_load_dwordx2 s[{SX}:{SX+1}], s[0:1], 64")
        A("v_lshrrev_b32 v31, 6, v0"); A("s_nop 0"); A("v_readfirstlane_b32 s3, v31")
        A("s_branch L_fin")
    else:
        A("s_endpgm")
    A(".p2align 6")
    A("L_helper:")
    SY, SZ, SO = 32, 36, 40
    A(f"s_load_dwordx2 s[{SX}:{SX+1}], s[0:1], 64")
    A("s_load_dwordx2 s[52:53], s[0:1], 56")
    A(f"s_load_dwordx2 s[{SY}:{SY+1}], s[0:1], 24")
    A(f"s_load_dwordx2 s[{SZ}:{SZ+1}], s[0:1], 32")
    A(f"s_load_dwordx2 s[44:45], s[0:1], 40")
    A(f"s_load_dwordx2 s[{SO}:{SO+1}], s[0:1], 48")
    A("v_and_b32 v1, 63, v0")
    A("v_lshlrev_b32 v4, 4, v1")
    for r in range(4): A(f"v_mov_b32 v{12+r}, -1")
    A(f"s_mov_b32 s{SX+2}, {FLAGS+0x8000:#x}"); A(f"s_mov_b32 s{SX+3}, 0x20000")
    A("s_lshl_b32 s50, s2, 12")
    A("s_lshr_b32 s4, s47, 21")
    A("s_lshr_b32 s27, s4, 4"); A("s_lshl_b32 s27, s27, 2")
    A("s_lshl_b32 s7, s4, 10"); A("s_lshl_b32 s26, s4, 9")
    A("v_and_b32 v5, 0x1f0, v4")
    for d_, nb in ((SQ, 65536), (SY, 32768), (SZ, 32768), (SO, 65536)):
        A(f"s_mov_b32 s{d_+2}, {nb}"); A(f"s_mov_b32 s{d_+3}, 0x20000")
    C("d_debug[pair]: bits 19:0 = four 5-bit fields (16|xcc id), bits 22:20 = arrival ticket, bits 26:24 = done count")
    A("s_getreg_b32 s8, hwreg(HW_REG_XCC_ID, 0, 4)"); A("s_or_b32 s8, s8, 16")
    A(f"s_bfe_u32 s9, s2, {0x10000 | mbit[0]:#x}"); A(f"s_bfe_u32 s10, s2, {0x10000 | mbit[1]:#x}")
    A("s_lshl_b32 s10, s10, 1"); A("s_or_b32 s9, s9, s10")
    A("s_mul_i32 s10, s9, 5"); A("s_lshl_b32 s11, s8, s10"); A("s_or_b32 s10, s11, 0x100000")
    A("s_mul_i32 s8, s8, 0x8421")
    A("s_lshl_b32 s51, s4, 2"); A("v_mov_b32 v8, s51"); A("v_mov_b32 v9, s10")
    A("s_waitcnt lgkmcnt(0)")
    st(1)
    A("s_load_dword s27, s[44:45], s27")
    C("mark own mailbox empty (all ones)")
    A(f"buffer_store_dwordx4 v[12:15], v4, s[{SX}:{SX+3}], s50 offen")
    A(f"buffer_store_dwordx4 v[12:15], v4, s[{SX}:{SX+3}], s50 offen offset:1024")
    A("s_mov_b64 exec, 0xff")
    A(f"buffer_store_dwordx4 v[12:15], v4, s[{SX}:{SX+3}], s50 offen offset:2048")
    if fb:
        A("s_mov_b64 exec, 1")
        A("s_and_b32 s6, s2, 7"); A("s_lshl_b32 s6, s6, 12"); A(f"s_add_u32 s6, s6, {FLAGS:#x}")
        A("s_lshr_b32 s51, s2, 3"); A("s_lshl_b32 s51, s51, 2"); A("s_add_u32 s6, s6, s51")
        A(f"buffer_store_dword v4, v4, s[{SX}:{SX+3}], s6 offen")
    A("s_mov_b64 exec, -1")
    A(f"s_mov_b32 s49, {CEXP:#x}")
    A("v_lshrrev_b32 v7, 5, v1"); A("v_lshlrev_b32 v7, 3, v7")
    VT8 = 32
    A("v_mov_b32 v6, 0xff800000")
    for e in range(8): A(f"v_mov_b32 v{VT8+e}, 0")
    A("s_cmp_lg_u32 s9, 0"); A("s_cbranch_scc1 L_notree")
    if notree: A("s_branch L_notree")
    C("tree token (one workgroup per pair): score + mask bias, value row")
    A(f"buffer_load_dwordx4 v[16:19], v4, s[{SQ}:{SQ+3}], s7 offen")
    A(f"buffer_load_dwordx4 v[20:23], v5, s[{SY}:{SY+3}], s26 offen")
    A(f"buffer_load_dwordx4 v[24:27], v5, s[{SZ}:{SZ+3}], s26 offen")
    A("s_waitcnt vmcnt(0) lgkmcnt(0)")
    A("v_mov_b32 v6, 0")
    for j in range(4):
        A(f"v_lshlrev_b32 v28, 16, v{16+j}"); A(f"v_lshlrev_b32 v29, 16, v{20+j}"); A("v_fmac_f32 v6, v28, v29")
        A(f"v_and_b32 v28, 0xffff0000, v{16+j}"); A(f"v_and_b32 v29, 0xffff0000, v{20+j}"); A("v_fmac_f32 v6, v28, v29")
    for s_ in (8, 4, 2, 1):
        A("s_nop 1"); A(f"v_add_f32_dpp v6, v6, v6 row_ror:{s_} row_mask:0xf bank_mask:0xf")
    A("v_mov_b32 v28, v6"); A("s_nop 1"); A("v_permlane16_swap_b32 v6, v28"); A("s_nop 1"); A("v_add_f32 v6, v6, v28")
    A("s_bitcmp1_b32 s4, 3")
    A("s_cselect_b32 s51, 0, 16"); A("s_lshl_b32 s27, s27, s51"); A("s_and_b32 s27, s27, 0xffff0000")
    A("v_mov_b32 v29, s27"); A("v_sub_f32 v29, 1.0, v29")
    A(f"v_mul_f32 v29, {f2u(-1.6e10):#x}, v29")
    A("v_add_f32 v6, v6, v29")
    for j in range(4):
        A(f"v_lshlrev_b32 v{VT8+2*j}, 16, v{24+j}"); A(f"v_and_b32 v{VT8+2*j+1}, 0xffff0000, v{24+j}")
    A("L_notree:")
    A("s_mov_b32 s56, -2")
    for j, mk_ in enumerate((mate[0], mate[1], mate[0] | mate[1])):
        A(f"s_xor_b32 s{57+j}, s50, {mk_ << 12:#x}")
    A("s_mov_b32 s5, 0x100000")
    A("s_waitcnt vmcnt(0) lgkmcnt(0)")
    if sat:
        A("s_lshl_b32 s6, s4, 2")
    if sat == 1:
        A("s_mov_b32 s10, s11")
        A("s_atomic_add s10, s[52:53], s6 glc")
        A("s_waitcnt lgkmcnt(0)")
        A("s_mov_b32 s10, 0x100000")
    st(2)
    A("s_barrier")
    st(3)
    C("near the end of the stream: take a ticket; the last of the four workgroups combines")
    MW = 40
    if not sat:
        A("s_mov_b64 exec, 1")
        A("global_atomic_add v9, v8, v9, s[52:53] sc0")
        A("s_mov_b64 exec, -1")
    for w in range(4): A(f"ds_read_b64 v[{MW+2*w}:{MW+2*w+1}], v7 offset:{16*w}")
    A("s_waitcnt lgkmcnt(0)")
    if sat: A("s_atomic_add s10, s[52:53], s6 glc")
    A(f"v_max3_f32 v10, v{MW}, v{MW+2}, v{MW+4}"); A(f"v_max3_f32 v10, v10, v{MW+6}, v6")
    for w in range(4): A(f"v_sub_f32 v{48+w}, v{MW+2*w}, v10")
    A("v_sub_f32 v52, v6, v10")
    for w in range(5): A(f"v_mul_f32 v{48+w}, s49, v{48+w}")
    for w in range(5): A(f"v_exp_f32 v{48+w}, v{48+w}")
    A("s_nop 0")
    A(f"v_fma_f32 v11, v48, v{MW+1}, v52")
    for w in range(1, 4): A(f"v_fmac_f32 v11, v{48+w}, v{MW+2*w+1}")
    O = 12
    A("v_min_u32 v10, s56, v10"); A("v_min_u32 v11, s56, v11")
    A("s_mov_b32 exec_lo, 1"); A("s_mov_b32 exec_hi, 1")
    A(f"buffer_store_dwordx2 v[10:11], v7, s[{SX}:{SX+3}], s50 offen offset:2048")
    A("s_mov_b64 exec, -1")
    for e in range(8): A(f"v_mul_f32 v{O+e}, v52, v{VT8+e}")
    if sat:
        A("s_waitcnt lgkmcnt(0)"); A("s_mov_b32 s51, s10")
    else:
        A("s_waitcnt vmcnt(0)")
        A("v_readfirstlane_b32 s51, v9")
    st(4)
    A("s_and_b32 s10, s51, 0xfffff"); A("s_or_b32 s10, s10, s11")
    A("s_and_b32 s51, s51, 0xfcf00000")
    A("s_cmp_eq_u32 s51, 0x300000"); A("s_cbranch_scc1 L_last")
    RD = 64
    def fma8(c, src):
        if pk:
            sel = "op_sel_hi:[0,1,1]" if c % 2 == 0 else "op_sel:[1,0,0] op_sel_hi:[1,1,1]"
            cb = c & ~1
            for e in range(0, 8, 2): A(f"v_pk_fma_f32 v[{O+e}:{O+e+1}], v[{cb}:{cb+1}], v[{src+e}:{src+e+1}], v[{O+e}:{O+e+1}] {sel}")
        else:
            for e in range(8): A(f"v_fmac_f32 v{O+e}, v{c}, v{src+e}")
    def ownmerge():
        for w in range(4):
            A(f"ds_read_b128 v[{RD+8*w}:{RD+8*w+3}], v4 offset:{LACC+2048*w}")
            A(f"ds_read_b128 v[{RD+8*w+4}:{RD+8*w+7}], v4 offset:{LACC+2048*w+1024}")
        for w in range(4):
            A(f"s_waitcnt lgkmcnt({6-2*w})")
            fma8(48 + w, RD + 8 * w)
    C("producer")
    A("s_barrier")
    st(5)
    ownmerge()
    for e in range(4): A(f"v_min_u32 v{O+e}, s56, v{O+e}")
    A(f"buffer_store_dwordx4 v[{O}:{O+3}], v4, s[{SX}:{SX+3}], s50 offen")
    for e in range(4, 8): A(f"v_min_u32 v{O+e}, s56, v{O+e}")
    A(f"buffer_store_dwordx4 v[{O+4}:{O+7}], v4, s[{SX}:{SX+3}], s50 offen offset:1024")
    st(6)
    if norr: A("s_mov_b32 s10, s8")
    elif sat == 2:
        A("s_mov_b32 s10, 0"); A("s_atomic_add s10, s[52:53], s6 glc"); A("s_waitcnt lgkmcnt(0)")
        A("s_and_b32 s10, s10, 0xfffff")
    elif sat == 0:
        A("global_load_dword v28, v8, s[52:53] sc1")
        A("s_waitcnt vmcnt(0)")
        A("v_readfirstlane_b32 s10, v28")
        A("s_and_b32 s10, s10, 0xfffff")
    A("s_cmp_eq_u32 s10, s8"); A("s_cbranch_scc1 " + ("L_pfin" if stamp else "L_done"))
    C("not known to share one XCD: publish write-through, then count as done")
    A(f"s_add_u32 s50, s50, {REGB:#x}")
    A(f"buffer_store_dwordx4 v[{O}:{O+3}], v4, s[{SX}:{SX+3}], s50 offen sc1")
    A(f"buffer_store_dwordx4 v[{O+4}:{O+7}], v4, s[{SX}:{SX+3}], s50 offen offset:1024 sc1")
    A("s_mov_b32 exec_lo, 1"); A("s_mov_b32 exec_hi, 1")
    A(f"buffer_store_dwordx2 v[10:11], v7, s[{SX}:{SX+3}], s50 offen offset:2048 sc1")
    A("s_mov_b64 exec, 1")
    A("v_mov_b32 v9, 0x1000000")
    A("s_waitcnt vmcnt(0)")
    A("global_atomic_add v8, v9, s[52:53]")
    if stamp:
        A("s_mov_b64 exec, -1")
        A("L_pfin:"); A("s_waitcnt vmcnt(0)"); st(7); A("s_branch L_hfin")
    else: A("s_endpgm")
    PM = 96
    def pollO():
        for j in range(3):
            b = PM + 12 * j
            A(f"buffer_load_dwordx4 v[{b}:{b+3}], v4, s[{SX}:{SX+3}], s{57+j} offen {ldsc}")
            A(f"buffer_load_dwordx4 v[{b+4}:{b+7}], v4, s[{SX}:{SX+3}], s{57+j} offen offset:1024 {ldsc}")
    def checkO():
        for j in range(3):
            b = PM + 12 * j
            A(f"s_waitcnt vmcnt({4-2*j})")
            for e in range(0, 8, 2):
                if j == 0 and e == 0: A(f"v_max_u32 v28, v{b}, v{b+1}")
                else: A(f"v_max3_u32 v28, v{b+e}, v{b+e+1}, v28")
        A("v_cmp_eq_u32 vcc, -1, v28")
    def accO():
        for j in range(3):
            fma8(53 + j, PM + 12 * j)
    A("L_last:")
    A("s_cmp_eq_u32 s10, s8"); A("s_cbranch_scc1 L_comb")
    C("different XCDs: wait for the three done marks, then read the write-through copies")
    A("L_wait:")
    A("global_load_dword v28, v8, s[52:53] sc1")
    A("s_waitcnt vmcnt(0)")
    A("v_readfirstlane_b32 s51, v28")
    A("s_sub_u32 s5, s5, 1"); A("s_cbranch_scc1 L_wend")
    A("s_bfe_u32 s51, s51, 0x30018")
    A("s_cmp_lg_u32 s51, 3"); A("s_cbranch_scc1 L_wait")
    A("L_wend:")
    for j in range(3): A(f"s_add_u32 s{57+j}, s{57+j}, {REGB:#x}")
    A("s_mov_b32 s5, 0x100000")
    A("L_comb:")
    for j in range(3):
        b = PM + 12 * j
        A(f"buffer_load_dwordx2 v[{b+8}:{b+9}], v7, s[{SX}:{SX+3}], s{57+j} offen offset:2048 {ldsc}")
    if otouch:
        A("s_mov_b64 exec, 1"); A(f"buffer_load_dword v31, v4, s[{SO}:{SO+3}], s7 offen"); A("s_mov_b64 exec, -1")
    if not noearly: pollO()
    A(f"s_waitcnt vmcnt({(0 if noearly else 6) + (1 if otouch else 0)})")
    A(f"v_max3_u32 v28, v{PM+8}, v{PM+9}, v{PM+20}"); A(f"v_max3_u32 v28, v{PM+21}, v{PM+32}, v28"); A(f"v_max_u32 v28, v{PM+33}, v28")
    A("v_cmp_eq_u32 vcc, -1, v28")
    A("s_sub_u32 s5, s5, 1")
    A("s_cbranch_scc1 L_mlok")
    A("s_cbranch_vccnz L_comb")
    A("L_mlok:")
    A(f"v_max3_f32 v28, v10, v{PM+8}, v{PM+20}"); A(f"v_max_f32 v28, v28, v{PM+32}")
    A("v_sub_f32 v52, v10, v28")
    for j in range(3): A(f"v_sub_f32 v{53+j}, v{PM+12*j+8}, v28")
    for j in range(4): A(f"v_mul_f32 v{52+j}, s49, v{52+j}")
    for j in range(4): A(f"v_exp_f32 v{52+j}, v{52+j}")
    A("v_mul_f32 v29, v52, v11")
    for j in range(3): A(f"v_fmac_f32 v29, v{53+j}, v{PM+12*j+9}")
    A("v_rcp_f32 v29, v29"); A("s_nop 0")
    for j in range(4): A(f"v_mul_f32 v{52+j}, v{52+j}, v29")
    for w in range(4): A(f"v_mul_f32 v{48+w}, v{48+w}, v52")
    for e in range(8): A(f"v_mul_f32 v{O+e}, v52, v{O+e}")
    A("s_mov_b32 s5, 0x100000")
    if not noearly:
        checkO()
        A("s_cbranch_vccnz L_late")
        A("L_early:")
        st(5)
        accO()
        A("s_barrier")
        st(6)
        ownmerge()
        A("s_branch L_out")
    A("L_late:")
    if pab: A("s_barrier"); pollO()
    else: pollO(); A("s_barrier")
    st(6)
    ownmerge()
    A("L_poll:")
    checkO()
    A("s_cbranch_vccz L_got")
    pollO()
    A("s_sub_u32 s5, s5, 1")
    A("s_cbranch_scc0 L_poll")
    A("s_waitcnt vmcnt(0)")
    A("L_got:")
    st(5)
    accO()
    A("L_out:")
    for e in range(4): A(f"v_cvt_pk_bf16_f32 v{24+e}, v{O+2*e}, v{O+2*e+1}")
    A(f"buffer_store_dwordx4 v[24:27], v4, s[{SO}:{SO+3}], s7 offen")
    if stamp:
        A("s_waitcnt vmcnt(0)"); st(7)
        A("L_hfin:")
        A("s_mov_b32 s3, 4")
        A("L_fin:")
        A("s_waitcnt lgkmcnt(0)")
        A(f"s_mov_b32 s{SX+2}, 0x20000000"); A(f"s_mov_b32 s{SX+3}, 0x20000")
        A(f"s_mul_i32 s51, s2, 5"); A("s_add_u32 s51, s51, s3"); A("s_lshl_b32 s51, s51, 5"); A("s_add_u32 s51, s51, 0x1000000")
        for i in range(8): A(f"v_mov_b32 v{32+i}, s{60+2*i}")
        A("v_mov_b32 v31, 0"); A("s_mov_b64 exec, 1")
        A(f"buffer_store_dwordx4 v[32:35], v31, s[{SX}:{SX+3}], s51 offen")
        A(f"buffer_store_dwordx4 v[36:39], v31, s[{SX}:{SX+3}], s51 offen offset:16")
    A("L_done:"); A("s_endpgm")
    if sel >= 0:
        per = 20
        A(".globl diag_kernel"); A(".p2align 8"); A(".type diag_kernel,@function"); A("diag_kernel:")
        A("s_cmp_ge_u32 s2, 1"); A("s_cbranch_scc1 L_done3")
        A("s_load_dwordx2 s[28:29], s[0:1], 64")
        A("v_lshlrev_b32 v1, 5, v0")
        A("s_mov_b32 s30, 0x20000000"); A("s_mov_b32 s31, 0x20000")
        A("s_waitcnt lgkmcnt(0)")
        A("s_mov_b32 s51, 0x1000000")
        for i in range(per):
            A(f"buffer_load_dword v{4+2*i}, v1, s[28:31], s51 offen")
            A(f"buffer_load_dword v{5+2*i}, v1, s[28:31], s51 offen offset:{4*sel}")
            A("s_add_u32 s51, s51, 2048")
        A("s_waitcnt vmcnt(0)")
        for i in range(1, per):
            A(f"v_min_u32 v4, v4, v{4+2*i}"); A(f"v_max_u32 v5, v5, v{5+2*i}")
        A("s_nop 1")
        A("v_readlane_b32 s4, v4, 0"); A("v_readlane_b32 s5, v5, 0")
        for l in range(1, 64):
            A(f"v_readlane_b32 s6, v4, {l}"); A(f"v_readlane_b32 s7, v5, {l}"); A("s_min_u32 s4, s4, s6"); A(f"s_max_u32 s5, s5, s7")
        A("s_sub_u32 s5, s5, s4"); A(f"s_mul_i32 s5, s5, {mult}")
        A("s_min_u32 s5, s5, 100000")
        A("s_memrealtime s[8:9]"); A("s_waitcnt lgkmcnt(0)")
        A("L_spin:"); A("s_memrealtime s[10:11]"); A("s_waitcnt lgkmcnt(0)"); A("s_sub_u32 s6, s10, s8"); A("s_cmp_lt_u32 s6, s5"); A("s_cbranch_scc1 L_spin")
        A("L_done3:"); A("s_endpgm")
    A('.section .rodata,"a"'); A(".p2align 6")
    need = max(nv, PM + 36)
    accum = (need + 3) // 4 * 4
    def kd(name, nvg):
        A(f".amdhsa_kernel {name}")
        A(f"  .amdhsa_next_free_vgpr {nvg}"); A("  .amdhsa_next_free_sgpr 80"); A(f"  .amdhsa_accum_offset {nvg}")
        A("  .amdhsa_group_segment_fixed_size 0"); A("  .amdhsa_kernarg_size 72"); A("  .amdhsa_user_sgpr_count 2")
        A("  .amdhsa_user_sgpr_kernarg_segment_ptr 1"); A("  .amdhsa_system_sgpr_workgroup_id_x 1")
        A("  .amdhsa_float_denorm_mode_32 3")
        A(".end_amdhsa_kernel")
    kd(KN, accum)
    if sel >= 0: A(".p2align 6"); kd("diag_kernel", 64)
    return "\n".join(L) + "\n"
if __name__ == "__main__":
    name = sys.argv[1]
    kw = {}
    for x in sys.argv[2:]:
        k, v = x.split("=")
        if k not in ('prof', 'wg', 'steps', 'xr'):
            try: v = int(v)
            except: pass
        if k.endswith("flags") or k.endswith("sc"): v = v.replace("+", " ").replace("none", "")
        kw[k] = v
    open(name, "w").write(gen(**kw))
```

```python
import sys, re
KN = "standalone__tree_speculative_verify_tree_attention_over_candidate_token_tree__decode_kernel"
main = open("o10.s").read()
cfgs = [([19,20,21,22,23,24,25,26], [13,14,15,16,17,18], {}),
        ([19,20,21,22,23,24,25,26], [13,14,15,16,17,18], {5:17}),
        ([19,20,21,22,23,24,25,26], [13,14,15,16,17,18], {6:18}),
        ([22,23,26,21,15,24,25,14], [13,17,16,18,19,20], {5:20}),
        ([26,22,23,24,25,15,19,21], [13,14,16,17,18,20], {1:14, 2:18, 6:20}),
        ([26,23,22,15,20,21,24,25], [13,14,16,17,18,19], {1:14, 4:18, 7:14}),
        ([22,23,26,14,20,21,24,25], [15,13,16,17,18,19], {}),
        ([22,23,26,14,15,21,24,25], [13,17,18,16,19,20], {})]
R = 7
L = []; A = L.append
def kd(name, nv):
    A(".p2align 6"); A(f".amdhsa_kernel {name}")
    A(f"  .amdhsa_next_free_vgpr {nv}"); A("  .amdhsa_next_free_sgpr 80"); A(f"  .amdhsa_accum_offset {nv}")
    A("  .amdhsa_group_segment_fixed_size 0"); A("  .amdhsa_kernarg_size 72"); A("  .amdhsa_user_sgpr_count 2")
    A("  .amdhsa_user_sgpr_kernarg_segment_ptr 1"); A("  .amdhsa_system_sgpr_workgroup_id_x 1"); A(".end_amdhsa_kernel")
def head(name): A(f".globl {name}"); A(".p2align 8"); A(f".type {name},@function"); A(f"{name}:")
for c, (wgb, stepb, xr) in enumerate(cfgs):
    soff = lambda s_: sum(((s_ >> i) & 1) << b for i, b in enumerate(stepb))
    head(f"p{c}_kernel")
    A("s_cmp_ge_u32 s2, 256"); A(f"s_cbranch_scc1 L_pd{c}")
    A("s_load_dwordx2 s[8:9], s[0:1], 8"); A("s_load_dwordx2 s[12:13], s[0:1], 16"); A("s_load_dwordx2 s[16:17], s[0:1], 64")
    A("v_lshrrev_b32 v1, 6, v0"); A("s_mov_b32 s27, 0"); A("v_readfirstlane_b32 s3, v1")
    for i, b in list(enumerate(wgb)) + list(xr.items()):
        A(f"s_bfe_u32 s26, s2, {0x10000 | i:#x}"); A(f"s_lshl_b32 s26, s26, {b}"); A("s_xor_b32 s27, s27, s26")
    A("v_and_b32 v2, 3, v0"); A("v_bfe_u32 v3, v0, 4, 2"); A("v_lshl_add_u32 v2, v3, 2, v2"); A("v_lshlrev_b32 v2, 4, v2")
    A("v_bfe_u32 v4, v0, 2, 2"); A("v_lshl_add_u32 v4, v1, 2, v4"); A("v_lshl_add_u32 v8, v4, 9, v2")
    A("v_and_b32 v4, 15, v0"); A("v_lshl_add_u32 v2, v1, 2, v3"); A("v_lshlrev_b32 v2, 9, v2"); A("v_lshl_add_u32 v10, v4, 4, v2")
    A("s_mov_b32 s10, 0x8000000"); A("s_mov_b32 s11, 0x20000"); A("s_mov_b32 s14, 0x8000000"); A("s_mov_b32 s15, 0x20000")
    A("s_mov_b32 s18, 0x20000000"); A("s_mov_b32 s19, 0x20000")
    A("s_waitcnt lgkmcnt(0)"); A("s_memrealtime s[36:37]")
    done = -1
    for i in range(256):
        d = 8 if i >= 240 else 5
        if i - d > done: A(f"s_waitcnt vmcnt({d-1})"); done = i - d
        if i == 132: A("s_memrealtime s[38:39]")
        if i % 2 == 0: A(f"s_xor_b32 s26, s27, {soff((i // 2) % 64):#x}")
        r = 16 + (i % 10) * 4
        vr, srd = ("v8", "s[8:11]") if i < 128 else ("v10", "s[12:15]")
        A(f"buffer_load_dwordx4 v[{r}:{r+3}], {vr}, {srd}, s26 offen offset:{256*(i%2)} nt")
    A("s_waitcnt vmcnt(0)"); A("s_memrealtime s[40:41]"); A("s_waitcnt lgkmcnt(0)")
    A("s_lshl_b32 s20, s2, 2"); A("s_add_u32 s20, s20, s3"); A("s_lshl_b32 s20, s20, 4"); A("s_add_u32 s20, s20, 0x1000000")
    A("v_mov_b32 v4, s36"); A("v_mov_b32 v5, s38"); A("v_mov_b32 v6, s40"); A(f"v_mov_b32 v7, {c}")
    A("v_mov_b32 v1, 0"); A("s_mov_b64 exec, 1")
    A("buffer_store_dwordx4 v[4:7], v1, s[16:19], s20 offen")
    A(f"L_pd{c}:"); A("s_endpgm")
head("init_kernel")
A("s_cmp_ge_u32 s2, 1"); A("s_cbranch_scc1 L_id"); A("s_load_dwordx2 s[16:17], s[0:1], 64"); A("s_mov_b32 s18, 0x20000000"); A("s_mov_b32 s19, 0x20000")
A("v_lshlrev_b32 v1, 2, v0"); A("v_mov_b32 v2, -1"); A("s_mov_b32 s20, 0x1800000"); A("s_waitcnt lgkmcnt(0)")
A("buffer_store_dword v2, v1, s[16:19], s20 offen"); A("L_id:"); A("s_endpgm")
head("col_kernel")
A("s_cmp_ge_u32 s2, 1"); A("s_cbranch_scc1 L_cd"); A("s_load_dwordx2 s[16:17], s[0:1], 64"); A("s_mov_b32 s18, 0x20000000"); A("s_mov_b32 s19, 0x20000")
A("v_lshlrev_b32 v1, 4, v0"); A("s_mov_b32 s20, 0x1000000"); A("s_waitcnt lgkmcnt(0)")
for i in range(16): A(f"buffer_load_dwordx4 v[{8+4*i}:{11+4*i}], v1, s[16:19], s20 offen"); A("s_add_u32 s20, s20, 1024")
A("s_waitcnt vmcnt(0)")
A("v_mov_b32 v4, v10")
for i in range(1, 16):
    A(f"v_min_u32 v8, v8, v{8+4*i}"); A(f"v_add_u32 v9, v9, v{9+4*i}"); A(f"v_add_u32 v10, v10, v{10+4*i}"); A(f"v_max_u32 v4, v4, v{10+4*i}")
A("s_nop 1")
A("v_readlane_b32 s4, v8, 0"); A("v_readlane_b32 s5, v9, 0"); A("v_readlane_b32 s6, v10, 0"); A("v_readlane_b32 s7, v4, 0"); A("v_readlane_b32 s24, v11, 0")
for l in range(1, 64):
    A(f"v_readlane_b32 s8, v8, {l}"); A(f"v_readlane_b32 s9, v9, {l}"); A(f"v_readlane_b32 s10, v10, {l}"); A(f"v_readlane_b32 s11, v4, {l}")
    A("s_min_u32 s4, s4, s8"); A("s_add_u32 s5, s5, s9"); A("s_add_u32 s6, s6, s10"); A("s_max_u32 s7, s7, s11")
A("s_lshl_b32 s8, s4, 10"); A("s_sub_u32 s5, s5, s8"); A("s_lshr_b32 s5, s5, 10"); A("s_sub_u32 s6, s6, s8"); A("s_lshr_b32 s6, s6, 10"); A("s_sub_u32 s7, s7, s4")
A("s_sub_u32 s9, s6, s5"); A("s_cmp_lt_u32 s24, 3"); A("s_cselect_b32 s5, s5, s7"); A("s_cselect_b32 s6, s9, s6")
A("s_and_b32 s24, s24, 7"); A("s_lshl_b32 s20, s24, 3"); A("s_add_u32 s20, s20, 0x1800000")
A("v_mov_b32 v1, 0"); A("s_mov_b64 exec, 1"); A("buffer_load_dwordx2 v[2:3], v1, s[16:19], s20 offen"); A("s_waitcnt vmcnt(0)")
A("v_min_u32 v2, s5, v2"); A("v_min_u32 v3, s6, v3"); A("buffer_store_dwordx2 v[2:3], v1, s[16:19], s20 offen")
A("L_cd:"); A("s_endpgm")
head("prt_kernel")
A("s_cmp_ge_u32 s2, 1"); A("s_cbranch_scc1 L_qd"); A("s_load_dwordx2 s[16:17], s[0:1], 64"); A("s_load_dwordx2 s[20:21], s[0:1], 56")
A("s_mov_b32 s18, 0x20000000"); A("s_mov_b32 s19, 0x20000"); A("s_mov_b32 s22, 256"); A("s_mov_b32 s23, 0x20000")
A("v_lshlrev_b32 v1, 2, v0"); A("s_mov_b32 s24, 0x1800000"); A("s_waitcnt lgkmcnt(0)")
A("buffer_load_dword v2, v1, s[16:19], s24 offen"); A("s_waitcnt vmcnt(0)"); A("buffer_store_dword v2, v1, s[20:23], 0 offen"); A("L_qd:"); A("s_endpgm")
code = "\n".join(L); L = []; A = L.append
for c in range(len(cfgs)): kd(f"p{c}_kernel", 184)
kd("init_kernel", 8); kd("col_kernel", 80); kd("prt_kernel", 8)
kds = "\n".join(L)
ll = [f"; @launch kernel={KN} grid=(256,1,1) block=(320,1,1) lds=8320", "; @launch kernel=init_kernel grid=(1,1,1) block=(64,1,1) lds=0"]
for r in range(R):
    for c in range(len(cfgs)):
        ll.append(f"; @launch kernel=p{c}_kernel grid=(256,1,1) block=(256,1,1) lds=90000"); ll.append("; @launch kernel=col_kernel grid=(1,1,1) block=(64,1,1) lds=0")
ll.append("; @launch kernel=prt_kernel grid=(1,1,1) block=(64,1,1) lds=0")
out = re.sub(r"; @launch grid.*\n", "\n".join(ll) + "\n", main)
out = out.replace('.section .rodata,"a"', code + '\n.section .rodata,"a"') + kds + "\n"
open("probe.s", "w").write(out)
```
